```python
import torch

def _softmax(x, axis=-1):
    return torch.softmax(x, dim=axis)
def _gelu(x):
    return torch.nn.functional.gelu(x, approximate="tanh")
def _silu(x):
    return torch.nn.functional.silu(x)
def _sigmoid(x):
    return torch.sigmoid(x)
def _layernorm(x, axis=-1, eps=1e-5):
    m = x.mean(dim=axis, keepdim=True)
    v = x.var(dim=axis, keepdim=True, unbiased=False)
    return (x - m) / torch.sqrt(v + eps)
def _scatter_add(tgt, idx, src, axis=0):
    return tgt.clone().index_add_(axis, idx, src)
def _segment_sum(src, seg, n):
    out = torch.zeros((n,) + src.shape[1:], dtype=src.dtype)
    return out.index_add_(0, seg, src)
def _pad(x, pw):
    flat = tuple(v for pair in reversed(pw) for v in pair)
    return torch.nn.functional.pad(x, flat)

kernel_name = 'sequential_preLN__gqa_block_cached__geglu_ffn__decode'

def setup_inputs():

    _w = (lambda a: (lambda t: t.to(torch.bfloat16) if t.is_floating_point() else t)(torch.as_tensor(a)))
    def _A_setup():
        B, Sq, D = 8, 1, 576
        Hq, Hkv, Sk, Dh = 32, 16, 4096, 128
        assert Hq % Hkv == 0, (Hq, Hkv)
        return {
            "x": _w((lambda *s: torch.randn(*s, dtype=torch.bfloat16) * 0.05)(B, Sq, D)),
            "k_cache": _w((lambda *s: torch.randn(*s, dtype=torch.bfloat16) * 3.2)(B, Hkv, Sk, Dh)),
            "v_cache": _w((lambda *s: torch.randn(*s, dtype=torch.bfloat16) * 0.4)(B, Hkv, Sk, Dh)),
            "wq": _w((lambda *s: torch.randn(*s, dtype=torch.bfloat16) * 3.2)(D, Hq * Dh) * (D ** -0.5)),
            "wo": _w((lambda *s: torch.randn(*s, dtype=torch.bfloat16) * 0.4)(Hq * Dh, D) * ((Hq * Dh) ** -0.5)),
        }
    _A_in = _A_setup()

    def _B_setup():
        B, S, D, F = 8, 1, 576, 4608
        return {
            "x": _w((lambda *s: torch.randn(*s, dtype=torch.bfloat16) * 0.05)(B, S, D)),
            "w_gate": _w((lambda *s: torch.randn(*s, dtype=torch.bfloat16) * 0.05)(D, F)),
            "w_up": _w((lambda *s: torch.randn(*s, dtype=torch.bfloat16) * 0.05)(D, F)),
            "w_down": _w((lambda *s: torch.randn(*s, dtype=torch.bfloat16) * 0.05)(F, D)),
        }
    _B_in = _B_setup()

    return {
        "A_x": _A_in["x"],
        "A_k_cache": _A_in["k_cache"],
        "A_v_cache": _A_in["v_cache"],
        "A_wq": _A_in["wq"],
        "A_wo": _A_in["wo"],
        "B_x": _B_in["x"],
        "B_w_gate": _B_in["w_gate"],
        "B_w_up": _B_in["w_up"],
        "B_w_down": _B_in["w_down"],
    }

def reference(A_x, A_k_cache, A_v_cache, A_wq, A_wo, B_x, B_w_gate, B_w_up, B_w_down):
    def _A_ref(x, k_cache, v_cache, wq, wo):
        B, Sq, D = x.shape
        Hq, Dh = 32, 128
        Hkv = k_cache.shape[1]
        rep = Hq // Hkv
        q = (lambda x, *d: x.permute(*d))((x @ wq).reshape(B, Sq, Hq, Dh), 0, 2, 1, 3)
        k = (lambda x, n, axis: torch.repeat_interleave(x, n, dim=axis))(k_cache, rep, axis=1)
        v = (lambda x, n, axis: torch.repeat_interleave(x, n, dim=axis))(v_cache, rep, axis=1)
        scores = torch.einsum("bhqd,bhkd->bhqk", q, k) * (Dh ** -0.5)
        p = _softmax(scores, axis=-1)
        o = torch.einsum("bhqk,bhkd->bhqd", p, v)
        return (lambda x, *d: x.permute(*d))(o, 0, 2, 1, 3).reshape(B, Sq, Hq * Dh) @ wo

    def _B_ref(x, w_gate, w_up, w_down):
        return (_gelu(x @ w_gate) * (x @ w_up)) @ w_down

    x = A_x
    h = x + _A_ref(_layernorm(x, axis=-1), A_k_cache, A_v_cache, A_wq, A_wo)
    h2 = h + _B_ref(_layernorm(h, axis=-1), B_w_gate, B_w_up, B_w_down)
    return h2
```

```python
import re

_MOD_CUT = re.compile(
    r"\s(offen|offset:|quad_perm|row_|off\b|nt\b|sc0\b|sc1\b|lds\b|idxen|op_sel|neg_|clamp|bank_mask|glc\b|offset0:|offset1:|cbsz|abid|blgp)"
)
_REG = re.compile(r"\b([vs])\[(\d+):(\d+)\]|\b([vs])(\d+)\b|\b(vcc|exec|m0|scc)\b")

TRANS = ("v_exp_f32", "v_log_f32", "v_rcp_f32", "v_rsq_f32", "v_sqrt_f32", "v_sin_f32", "v_cos_f32")


def regs_of(tok):
    out = []
    for m in _REG.finditer(tok):
        if m.group(1):
            out += [(m.group(1), i) for i in range(int(m.group(2)), int(m.group(3)) + 1)]
        elif m.group(4):
            out.append((m.group(4), int(m.group(5))))
        else:
            n = m.group(6)
            if n == "vcc":
                out += [("s", 106), ("s", 107)]
            elif n == "exec":
                out += [("s", 126), ("s", 127)]
            elif n == "m0":
                out.append(("s", 124))
    return out


class Asm:
    def __init__(self):
        self.lines = []
        self.reset_hazards()
        self.vmq = []
        self.lgq = []
        self.tagc = 0
        self.maxv = -1
        self.maxs = -1

    def reset_hazards(self):
        self.pos = 0
        self.vw = {}
        self.mfma_d = {}
        self.sw = {}
        self.crd = {}
        self.std = {}
        self.m0w = -100

    def raw(self, text):
        self.lines.append(text)

    def comment(self, text):
        self.lines.append("    ; " + text)

    def label(self, name):
        self.flush_hazards()
        self.lines.append(name + ":")

    def flush_hazards(self):
        need = 0
        for r, (p, k) in self.vw.items():
            w = 8 if k == "mfma" else 2
            need = max(need, w - (self.pos - p - 1))
        for r, p in self.sw.items():
            need = max(need, 5 - (self.pos - p - 1))
        for r, p in self.crd.items():
            need = max(need, 3 - (self.pos - p - 1))
        for r, p in self.std.items():
            need = max(need, 2 - (self.pos - p - 1))
        need = max(need, 1 - (self.pos - self.m0w - 1))
        self.nop(need)

    def nop(self, n):
        while n > 0:
            k = min(n, 16)
            self.lines.append("    s_nop %d" % (k - 1))
            self.pos += k
            n -= k

    def __call__(self, text):
        text = text.strip()
        mn, _, rest = text.partition(" ")
        rest = " " + rest.strip()
        m = _MOD_CUT.search(rest + " ")
        ops_txt = rest[: m.start()] if m else rest
        mods = rest[m.start():] if m else ""
        ops = [o.strip() for o in ops_txt.split(",") if o.strip()]
        opr = [regs_of(o) for o in ops]
        is_v = mn.startswith("v_")
        is_mfma = mn.startswith("v_mfma")
        is_vmem = mn.startswith(("buffer_", "global_"))
        is_ds = mn.startswith("ds_")
        is_dpp = "quad_perm" in mods or "row_" in mods
        is_perm = mn.startswith("v_permlane")
        is_rl = mn.startswith(("v_readlane", "v_readfirstlane"))
        base = mn.replace("_e32", "").replace("_e64", "").replace("_dpp", "")
        is_trans = base in TRANS
        lds_dma = is_vmem and (" lds" in mods or "_lds_" in mn)
        reads, writes = [], []
        if is_perm:
            reads = opr[0] + opr[1]
            writes = opr[0] + opr[1]
        elif is_v:
            writes = list(opr[0])
            srcs = opr[1:]
            if "_co_" in mn:
                writes += opr[1]
                srcs = opr[2:]
            for s in srcs:
                reads += s
            if base.startswith(("v_fmac", "v_pk_fmac", "v_dot2c")):
                reads += opr[0]
            if base == "v_cndmask_b32" and len(ops) == 3:
                reads += [("s", 106), ("s", 107)]
        elif is_vmem:
            if mn.startswith(("buffer_load", "global_load")) and not lds_dma:
                writes = list(opr[0])
                for s in opr[1:]:
                    reads += s
                if "d16" in mn:
                    reads += opr[0]
            elif "atomic" in mn and " sc0" in mods:
                if mn.startswith("buffer"):
                    writes = list(opr[0])
                    for s in opr:
                        reads += s
                else:
                    writes = list(opr[0])
                    for s in opr[1:]:
                        reads += s
            else:
                for s in opr:
                    reads += s
        elif is_ds:
            if mn.startswith(("ds_read", "ds_bpermute", "ds_permute", "ds_swizzle")) or "_rtn" in mn:
                writes = list(opr[0])
                for s in opr[1:]:
                    reads += s
            else:
                for s in opr:
                    reads += s
        else:
            if mn.startswith(("s_cmp", "s_waitcnt", "s_barrier", "s_branch", "s_cbranch", "s_nop", "s_endpgm", "s_sleep", "s_setprio", "s_bitcmp")):
                for s in opr:
                    reads += s
            elif opr:
                writes = list(opr[0])
                for s in opr[1:]:
                    reads += s
        for k, i in reads + writes:
            if k == "v":
                self.maxv = max(self.maxv, i)
            elif i < 102:
                self.maxs = max(self.maxs, i)

        need = 0

        def req(p, w):
            nonlocal need
            need = max(need, w - (self.pos - p - 1))

        vreads = [r for r in reads if r[0] == "v"]
        vwrites = [r for r in writes if r[0] == "v"]
        sreads = [r for r in reads if r[0] == "s"]
        if is_mfma:
            dlo, dhi = opr[0][0][1], opr[0][-1][1]
            ab = opr[1] + opr[2]
            c = opr[3] if len(opr) > 3 else []
            for r in ab:
                if r in self.vw:
                    p, k = self.vw[r]
                    req(p, 8 if k == "mfma" else 2)
            for r in c:
                if r in self.vw:
                    p, k = self.vw[r]
                    if k == "mfma":
                        same = self.mfma_d.get(r, (0, None))[1] == (c[0][1], c[-1][1])
                        req(p, 0 if same else 6)
                    else:
                        req(p, 2)
            for r in vwrites:
                if r in self.vw and self.vw[r][1] == "mfma" and r not in c:
                    req(self.vw[r][0], 6)
        else:
            for r in vreads:
                if r in self.vw:
                    p, k = self.vw[r]
                    if k == "mfma":
                        req(p, 8)
                    elif is_v:
                        if is_dpp and r in opr[1]:
                            req(p, 2)
                        if is_perm:
                            req(p, 2)
                        if is_rl:
                            req(p, 1)
                        if k == "trans" and not is_trans:
                            req(p, 1)
            for r in vwrites:
                if r in self.vw and self.vw[r][1] == "mfma":
                    req(self.vw[r][0], 8)
                if is_v and r in self.crd:
                    req(self.crd[r], 3)
                if r in self.std:
                    req(self.std[r], 2)
        for r in sreads:
            if r in self.sw:
                if is_vmem:
                    req(self.sw[r], 5)
                elif is_v:
                    req(self.sw[r], 4 if is_rl else 2)
        if lds_dma:
            req(self.m0w, 1)
        self.nop(need)
        p = self.pos
        self.lines.append("    " + text)
        self.pos += 1
        if mn == "s_nop":
            self.pos += int(ops[0])
        for r in vwrites:
            self.crd.pop(r, None)
            self.std.pop(r, None)
            if is_mfma:
                self.vw[r] = (p, "mfma")
                self.mfma_d[r] = (p, (opr[0][0][1], opr[0][-1][1]))
            elif is_v:
                self.vw[r] = (p, "trans" if is_trans else "valu")
                self.mfma_d.pop(r, None)
            else:
                self.vw.pop(r, None)
                self.mfma_d.pop(r, None)
        if is_mfma and len(opr) > 3:
            for r in opr[3]:
                self.crd[r] = p
        for r in writes:
            if r[0] == "s":
                if is_v:
                    self.sw[r] = p
                else:
                    self.sw.pop(r, None)
                    if r == ("s", 124):
                        self.m0w = p
        if is_vmem and ("store_dwordx4" in mn or "store_dwordx3" in mn):
            data = opr[0] if mn.startswith("buffer") else opr[1]
            for r in data:
                self.std[r] = p
        tag = None
        if is_vmem and not mn.startswith(("buffer_wbl2", "buffer_inv")):
            self.tagc += 1
            tag = self.tagc
            self.vmq.append(tag)
        elif is_ds:
            self.tagc += 1
            tag = self.tagc
            self.lgq.append(tag)
        return tag

    def wait_vm(self, tag):
        if tag in self.vmq:
            idx = self.vmq.index(tag)
            n = len(self.vmq) - 1 - idx
            assert n <= 63
            self("s_waitcnt vmcnt(%d)" % n)
            self.vmq = self.vmq[idx + 1:]

    def wait_lg(self, tag):
        if tag in self.lgq:
            idx = self.lgq.index(tag)
            n = len(self.lgq) - 1 - idx
            if n > 15:
                n = 15
                idx = len(self.lgq) - 1 - n
            self("s_waitcnt lgkmcnt(%d)" % n)
            self.lgq = self.lgq[idx + 1:]

    def wait_vm_all(self):
        self("s_waitcnt vmcnt(0)")
        self.vmq = []

    def wait_lg_all(self):
        self("s_waitcnt lgkmcnt(0)")
        self.lgq = []

    def wait_all(self):
        self("s_waitcnt vmcnt(0) lgkmcnt(0)")
        self.vmq = []
        self.lgq = []

    def text(self):
        return "\n".join(self.lines) + "\n"


def vr(lo, n=1):
    return "v%d" % lo if n == 1 else "v[%d:%d]" % (lo, lo + n - 1)


def sr(lo, n=1):
    return "s%d" % lo if n == 1 else "s[%d:%d]" % (lo, lo + n - 1)
```

```python
import sys, struct
from asmlib import Asm, vr, sr

NAME = "sequential_preLN__gqa_block_cached__geglu_ffn__decode"

LOG2E = 0x3FB8AA3B
SCALE = 0x3DB504F3
INV576 = struct.unpack("<I", struct.pack("<f", 1.0 / 576.0))[0]
EPS = struct.unpack("<I", struct.pack("<f", 1e-5))[0]

WS_PART = 0x0
WS_STAT = 0x40000
WS_ACC1 = 0x50000
WS_T = 0x60000
WS_SIZE = 0x80000

P_X, P_K, P_V, P_WQ, P_WO, P_BX, P_WG, P_WU, P_WD, P_OUT, P_DBG, P_WS = [4 + 2 * i for i in range(12)]

DPP = " row_mask:0xf bank_mask:0xf"


def f32(x):
    return "0x%08x" % struct.unpack("<I", struct.pack("<f", x))[0]


def prologue(a, nwg, done):
    a("s_cmp_ge_u32 s2, %d" % nwg)
    a("s_cbranch_scc1 %s" % done)
    a("s_load_dwordx16 s[4:19], s[0:1], 0")
    a("s_load_dwordx8 s[20:27], s[0:1], 64")


def srd(a, d, ptr, nbytes, off_lo=None):
    if off_lo is None:
        a("s_mov_b32 s%d, s%d" % (d, ptr))
        a("s_mov_b32 s%d, s%d" % (d + 1, ptr + 1))
    else:
        a("s_add_u32 s%d, s%d, %s" % (d, ptr, off_lo))
        a("s_addc_u32 s%d, s%d, 0" % (d + 1, ptr + 1))
    a("s_mov_b32 s%d, %s" % (d + 2, nbytes if isinstance(nbytes, str) else "0x%x" % nbytes))
    a("s_mov_b32 s%d, 0x00020000" % (d + 3))


def allreduce(a, v, t, op="add", lo=True, hi=True):
    ins = "v_%s_f32" % op
    if lo:
        for m in ("quad_perm:[1,0,3,2]", "quad_perm:[2,3,0,1]", "row_half_mirror", "row_mirror"):
            a("%s_dpp v%d, v%d, v%d %s%s" % (ins, v, v, v, m, DPP))
    if hi:
        for sw in ("v_permlane16_swap_b32", "v_permlane32_swap_b32"):
            a("v_mov_b32 v%d, v%d" % (t, v))
            a("%s v%d, v%d" % (sw, v, t))
            a("%s v%d, v%d, v%d" % (ins, v, v, t))


def bf16r(a, d, s):
    a("v_cvt_pk_bf16_f32 v%d, v%d, v%d" % (d, s, s))
    a("v_lshlrev_b32 v%d, 16, v%d" % (d, d))


def layernorm9(a, xs, t0):
    s, t, mean, sd, rc, e = t0, t0 + 1, t0 + 2, t0 + 3, t0 + 4, t0 + 5
    a("v_add_f32 v%d, v%d, v%d" % (s, xs[0], xs[1]))
    for i in range(2, 9):
        a("v_add_f32 v%d, v%d, v%d" % (s, s, xs[i]))
    allreduce(a, s, t)
    a("v_mul_f32 v%d, 0x%08x, v%d" % (mean, INV576, s))
    a("v_sub_f32 v%d, v%d, v%d" % (t, xs[0], mean))
    a("v_mul_f32 v%d, v%d, v%d" % (s, t, t))
    for i in range(1, 9):
        a("v_sub_f32 v%d, v%d, v%d" % (t, xs[i], mean))
        a("v_fmac_f32 v%d, v%d, v%d" % (s, t, t))
    allreduce(a, s, t)
    a("v_mul_f32 v%d, 0x%08x, v%d" % (s, INV576, s))
    bf16r(a, s, s)
    a("v_add_f32 v%d, 0x%08x, v%d" % (s, EPS, s))
    bf16r(a, s, s)
    a("v_sqrt_f32 v%d, v%d" % (sd, s))
    a("v_rcp_f32 v%d, v%d" % (rc, sd))
    a("v_fma_f32 v%d, -v%d, v%d, v%d" % (e, sd, sd, s))
    a("v_mul_f32 v%d, 0.5, v%d" % (rc, rc))
    a("v_fmac_f32 v%d, v%d, v%d" % (sd, e, rc))
    bf16r(a, sd, sd)
    bf16r(a, mean, mean)
    a("v_rcp_f32 v%d, v%d" % (rc, sd))
    for i in range(9):
        x = xs[i]
        a("v_sub_f32 v%d, v%d, v%d" % (x, x, mean))
        bf16r(a, x, x)
        a("v_mul_f32 v%d, v%d, v%d" % (t, x, rc))
        a("v_fma_f32 v%d, -v%d, v%d, v%d" % (e, t, sd, x))
        a("v_fma_f32 v%d, v%d, v%d, v%d" % (x, e, rc, t))


def descriptor(name, nv, ns):
    nv = (nv + 7) // 8 * 8
    return """.section .rodata,"a"
.p2align 6
.amdhsa_kernel %s
  .amdhsa_next_free_vgpr %d
  .amdhsa_next_free_sgpr %d
  .amdhsa_accum_offset %d
  .amdhsa_group_segment_fixed_size 0
  .amdhsa_kernarg_size 96
  .amdhsa_user_sgpr_count 2
  .amdhsa_user_sgpr_kernarg_segment_ptr 1
  .amdhsa_system_sgpr_workgroup_id_x 1
  .amdhsa_float_denorm_mode_32 3
.end_amdhsa_kernel
.text
""" % (name, nv, ns, nv)


def kstart(a, name):
    a.raw(".globl %s\n.p2align 8\n.type %s,@function\n%s:" % (name, name, name))
    a.reset_hazards()
    a.vmq = []
    a.lgq = []
    a.maxv = 0
    a.maxs = 2


R = 12
A_LDS_XD = 0
A_LDS_QS = 2304
A_LDS_ML = 2816
A_LDS_RED = 4096
A_LDS = 4096 + 32768


def kernel_A(a, name):
    kstart(a, name)
    done = name + "_done"
    prologue(a, 256, done)
    sK, sV, sWQ, sX, sWS = 28, 32, 36, 40, 44
    sW, sHKV, sB, sHALF, sT0, sT1, sPIDX = 48, 49, 50, 51, 52, 53, 54
    sBLK = 56
    sKG = 64
    vL, vKO, vVO, vWQO, vT0, vT1, vT2 = 1, 2, 3, 4, 5, 6, 7
    vM = 8
    vQ = 12
    vACC = 16
    vB = 24
    vMX, vLS, vNM = 32, 33, 34
    vTMP = 35
    vRING = 44
    vWQ = 92
    vS = 92
    vC = 108
    vU = 120
    a("v_and_b32 v%d, 63, v0" % vL)
    a("v_lshrrev_b32 v%d, 6, v0" % vT0)
    a("v_readfirstlane_b32 s%d, v%d" % (sW, vT0))
    a("s_and_b32 s%d, s2, 7" % sT0)
    a("s_lshr_b32 s%d, s2, 3" % sT1)
    a("s_lshl_b32 s%d, s%d, 1" % (sHKV, sT0))
    a("s_and_b32 s%d, s%d, 1" % (sT0, sT1))
    a("s_add_u32 s%d, s%d, s%d" % (sHKV, sHKV, sT0))
    a("s_lshr_b32 s%d, s%d, 1" % (sB, sT1))
    a("s_and_b32 s%d, s%d, 7" % (sB, sB))
    a("s_lshr_b32 s%d, s%d, 4" % (sHALF, sT1))
    a("s_lshl_b32 s%d, s%d, 4" % (sPIDX, sB))
    a("s_add_u32 s%d, s%d, s%d" % (sPIDX, sPIDX, sHKV))
    a("s_lshl_b32 s%d, s%d, 1" % (sPIDX, sPIDX))
    a("s_add_u32 s%d, s%d, s%d" % (sPIDX, sPIDX, sHALF))
    for i in range(8):
        a("s_mov_b32 s%d, 0x%x" % (sBLK + i, i * 65536))
    for i in range(9):
        a("s_mov_b32 s%d, 0x%x" % (sKG + i, i * 32768))
    a("v_bfe_u32 v%d, v%d, 2, 2" % (vT0, vL))
    a("v_lshlrev_b32 v%d, 8, v%d" % (vKO, vT0))
    a("v_lshrrev_b32 v%d, 4, v%d" % (vT1, vL))
    a("v_lshl_add_u32 v%d, v%d, 6, v%d" % (vKO, vT1, vKO))
    a("v_and_b32 v%d, 3, v%d" % (vT0, vL))
    a("v_lshl_add_u32 v%d, v%d, 4, v%d" % (vKO, vT0, vKO))
    a("s_lshl_b32 s%d, s%d, 12" % (sT0, sW))
    a("v_add_u32 v%d, s%d, v%d" % (vKO, sT0, vKO))
    a("v_lshlrev_b32 v%d, 4, v%d" % (vVO, vL))
    a("v_add_u32 v%d, s%d, v%d" % (vVO, sT0, vVO))
    a("s_mul_i32 s%d, s%d, 36" % (sT1, sW))
    a("v_add_u32 v%d, s%d, v%d" % (vT0, sT1, vT1))
    a("v_lshlrev_b32 v%d, 13, v%d" % (vWQO, vT0))
    a("v_and_b32 v%d, 15, v%d" % (vT2, vL))
    a("v_lshl_add_u32 v%d, v%d, 4, v%d" % (vWQO, vT2, vWQO))
    a("v_and_b32 v%d, 1, v%d" % (vT0, vL))
    a("v_lshlrev_b32 v%d, 4, v%d" % (vT0, vT0))
    a("v_mov_b32 v%d, 0xffff" % vT2)
    a("v_lshlrev_b32 v%d, v%d, v%d" % (vT2, vT0, vT2))
    a("v_bfe_u32 v%d, v%d, 1, 2" % (vT0, vL))
    for j in range(4):
        a("v_cmp_eq_u32 vcc, %d, v%d" % (j, vT0))
        a("v_cndmask_b32 v%d, 0, v%d, vcc" % (vM + j, vT2))
    a("s_waitcnt lgkmcnt(0)")
    a("s_lshl_b32 s%d, s%d, 19" % (sT0, sPIDX))
    srd(a, sK, P_K, 0x80000, "s%d" % sT0)
    srd(a, sV, P_V, 0x80000, "s%d" % sT0)
    a("s_lshl_b32 s%d, s%d, 9" % (sT0, sHKV))
    a("s_sub_u32 s%d, 0x%x, s%d" % (sT1, 576 * 8192, sT0))
    srd(a, sWQ, P_WQ, "s%d" % sT1, "s%d" % sT0)
    a("s_mul_i32 s%d, s%d, 1152" % (sT0, sB))
    srd(a, sX, P_X, 1152, "s%d" % sT0)
    srd(a, sWS, P_WS, WS_SIZE)
    xs = list(range(16, 25))
    a("v_lshlrev_b32 v%d, 1, v%d" % (vT0, vL))
    xt = [a("buffer_load_ushort v%d, v%d, %s, 0 offen offset:%d" % (xs[e], vT0, sr(sX, 4), e * 128)) for e in range(9)]

    def wq_load(u):
        kg, hh = u >> 1, u & 1
        slot = vWQ + 4 * (u % 9)
        return a("buffer_load_dwordx4 %s, v%d, %s, s%d offen offset:%d" % (vr(slot, 4), vWQO, sr(sWQ, 4), sKG + kg, hh * 256))

    def kv_load(n):
        slot = vRING + 4 * (n % R)
        isv = n >= 32
        m = n & 31
        return a("buffer_load_dwordx4 %s, v%d, %s, s%d offen offset:%d nt" % (
            vr(slot, 4), vVO if isv else vKO, sr(sV if isv else sK, 4), sBLK + (m >> 2), (m & 3) * 1024))

    wt = {}
    kt = {}
    for u in range(9):
        wt[u] = wq_load(u)
    for n in range(4):
        kt[n] = kv_load(n)
    a("s_cmp_lt_u32 s2, 18")
    a("s_cselect_b32 s%d, 4, 0" % sT0)
    a("s_cmp_lt_u32 s%d, s%d" % (sW, sT0))
    a("s_cbranch_scc0 %s_nozero" % name)
    a("s_lshl_b32 s%d, s2, 10" % sT0)
    a("s_add_u32 s%d, s%d, 0x%x" % (sT0, sT0, WS_ACC1))
    a("v_lshlrev_b32 v%d, 2, v0" % vT0)
    a("v_mov_b32 v%d, 0" % vT1)
    a.raw("    buffer_store_dword v%d, v%d, %s, s%d offen" % (vT1, vT0, sr(sWS, 4), sT0))
    a.label("%s_nozero" % name)
    a.wait_vm(xt[8])
    for e in range(9):
        a("v_lshlrev_b32 v%d, 16, v%d" % (xs[e], xs[e]))
    layernorm9(a, xs, 26)
    a("v_lshlrev_b32 v%d, 2, v%d" % (vT0, vL))
    for e in range(9):
        a("v_cvt_pk_bf16_f32 v%d, v%d, v%d" % (xs[e], xs[e], xs[e]))
        a("ds_write_b32 v%d, v%d offset:%d" % (vT0, xs[e], A_LDS_XD + e * 256))
    a.wait_lg_all()
    xk = list(range(35, 44))
    a("v_lshrrev_b32 v%d, 4, v%d" % (vT0, vL))
    a("s_mul_i32 s%d, s%d, 36" % (sT1, sW))
    a("v_add_lshl_u32 v%d, v%d, s%d, 2" % (vT0, vT0, sT1))
    xkt = [a("ds_read_b32 v%d, v%d offset:%d" % (xk[kg], vT0, A_LDS_XD + kg * 16)) for kg in range(9)]
    nextk = 4
    for u in range(18):
        kg, hh = u >> 1, u & 1
        bb = vB + 4 * (kg & 1)
        if hh == 0:
            a.wait_lg(xkt[kg])
            for j in range(4):
                a("v_and_b32 v%d, v%d, v%d" % (bb + j, xk[kg], vM + j))
        a.wait_vm(wt[u])
        slot = vWQ + 4 * (u % 9)
        acc = vACC + 4 * hh
        a("v_mfma_f32_16x16x32_bf16 %s, %s, %s, %s" % (vr(acc, 4), vr(slot, 4), vr(bb, 4), "0" if kg == 0 else vr(acc, 4)))
        if u + 9 < 18:
            wt[u + 9] = wq_load(u + 9)
        if u == 8:
            while nextk < R:
                kt[nextk] = kv_load(nextk)
                nextk += 1
    a("s_lshl_b32 s%d, s%d, 11" % (sT0, sW))
    a("v_lshlrev_b32 v%d, 4, v%d" % (vT0, vL))
    a("v_add_u32 v%d, s%d, v%d" % (vT0, sT0, vT0))
    a("ds_write_b128 v%d, %s offset:%d" % (vT0, vr(vACC, 4), A_LDS_RED))
    a("ds_write_b128 v%d, %s offset:%d" % (vT0, vr(vACC + 4, 4), A_LDS_RED + 1024))
    a.wait_lg_all()
    a("s_barrier")
    a("s_cmp_ge_u32 s%d, 8" % sW)
    a("s_cbranch_scc1 %s_qskip" % name)
    a("v_lshlrev_b32 v%d, 2, v0" % vT0)
    rr = list(range(16, 32))
    tags = [a("ds_read_b32 v%d, v%d offset:%d" % (rr[w], vT0, A_LDS_RED + w * 2048)) for w in range(16)]
    a("v_bfe_u32 v%d, v0, 6, 2" % vT1)
    a("v_and_b32 v%d, 3, v0" % vT2)
    a("v_lshl_add_u32 v%d, v%d, 2, v%d" % (vT1, vT1, vT2))
    a("v_bfe_u32 v%d, v0, 2, 3" % vT2)
    a("v_lshl_add_u32 v%d, v%d, 3, v%d" % (vT1, vT1, vT2))
    a("v_lshrrev_b32 v%d, 8, v0" % vT2)
    a("v_lshl_add_u32 v%d, v%d, 7, v%d" % (vT1, vT2, vT1))
    a("v_lshlrev_b32 v%d, 1, v%d" % (vT1, vT1))
    a.wait_lg(tags[1])
    a("v_add_f32 v%d, v%d, v%d" % (rr[0], rr[0], rr[1]))
    for w in range(2, 16):
        a.wait_lg(tags[w])
        a("v_add_f32 v%d, v%d, v%d" % (rr[0], rr[0], rr[w]))
    a("v_cvt_pk_bf16_f32 v%d, v%d, v%d" % (rr[0], rr[0], rr[0]))
    a("ds_write_b16 v%d, v%d offset:%d" % (vT1, rr[0], A_LDS_QS))
    a.wait_lg_all()
    a.label("%s_qskip" % name)
    a("s_barrier")
    a("v_lshrrev_b32 v%d, 4, v%d" % (vT0, vL))
    a("v_and_b32 v%d, 3, v%d" % (vT1, vL))
    a("v_lshl_add_u32 v%d, v%d, 2, v%d" % (vT0, vT0, vT1))
    a("v_bfe_u32 v%d, v%d, 3, 1" % (vT1, vL))
    a("v_lshl_add_u32 v%d, v%d, 4, v%d" % (vT0, vT1, vT0))
    a("v_lshlrev_b32 v%d, 4, v%d" % (vT0, vT0))
    a("ds_read_b128 %s, v%d offset:%d" % (vr(vQ, 4), vT0, A_LDS_QS))
    a("v_mov_b32 v%d, 0xff800000" % vMX)
    a("s_mov_b32 s%d, 0xffff0000" % sT0)
    a.wait_lg_all()

    raw = {}

    def post(n):
        c = vC + 4 * (n % 3)
        t = vU + (n & 1)
        a("v_mov_b32_dpp v%d, v%d quad_perm:[0,0,0,0]%s" % (t, c, DPP))
        for j in range(1, 4):
            a("v_add_f32_dpp v%d, v%d, v%d quad_perm:[%d,%d,%d,%d]%s" % (t, c + j, t, j, j, j, j, DPP))
        if n & 1:
            p, x, y = vU + 2, vU + 3, vU + 4
            a("v_cvt_pk_bf16_f32 v%d, v%d, v%d" % (p, vU, vU + 1))
            a("v_lshlrev_b32 v%d, 16, v%d" % (x, p))
            a("v_and_b32 v%d, s%d, v%d" % (y, sT0, p))
            a("v_mul_f32 v%d, 0x%08x, v%d" % (x, SCALE, x))
            a("v_mul_f32 v%d, 0x%08x, v%d" % (y, SCALE, y))
            a("v_max3_f32 v%d, v%d, v%d, v%d" % (vMX, vMX, x, y))
            a("v_cvt_pk_bf16_f32 v%d, v%d, v%d" % (vS + (n >> 1), x, y))

    for n in range(32):
        a.wait_vm(kt[n])
        slot = vRING + 4 * (n % R)
        a("v_mfma_f32_16x16x32_bf16 %s, %s, %s, 0" % (vr(vC + 4 * (n % 3), 4), vr(slot, 4), vr(vQ, 4)))
        kt[n + R] = kv_load(n + R)
        if n >= 2:
            post(n - 2)
    post(30)
    post(31)
    allreduce(a, vMX, vT1, "max", lo=False, hi=True)
    bf16r(a, vMX, vMX)
    a("v_mul_f32 v%d, 0x%08x, v%d" % (vNM, LOG2E ^ 0x80000000, vMX))
    a("v_mov_b32 v%d, 0" % vLS)
    a("s_mov_b32 s%d, 0x%08x" % (sT1, LOG2E))
    for n in range(32, 64):
        m = n - 32
        bb = vB + 4 * (m & 1)
        e = vU + (m & 1)
        if m & 1:
            a("v_and_b32 v%d, s%d, v%d" % (e, sT0, vS + (m >> 1)))
        else:
            a("v_lshlrev_b32 v%d, 16, v%d" % (e, vS + (m >> 1)))
        a("v_fma_f32 v%d, v%d, s%d, v%d" % (e, e, sT1, vNM))
        a("v_exp_f32 v%d, v%d" % (e, e))
        a("v_add_f32 v%d, v%d, v%d" % (vLS, vLS, e))
        a("v_cvt_pk_bf16_f32 v%d, v%d, v%d" % (e, e, e))
        for j in range(4):
            a("v_and_b32 v%d, v%d, v%d" % (bb + j, e, vM + j))
        a.wait_vm(kt[n])
        slot = vRING + 4 * (n % R)
        acc = vACC + 4 * (m & 1)
        a("v_mfma_f32_16x16x32_bf16 %s, %s, %s, %s" % (vr(acc, 4), vr(slot, 4), vr(bb, 4), "0" if m < 2 else vr(acc, 4)))
        if n + R < 64:
            kt[n + R] = kv_load(n + R)
    allreduce(a, vLS, vT1, "add", lo=False, hi=True)
    for j in range(4):
        a("v_add_f32 v%d, v%d, v%d" % (vACC + j, vACC + j, vACC + 4 + j))
    a("s_lshl_b32 s%d, s%d, 10" % (sT0, sW))
    a("v_lshlrev_b32 v%d, 4, v%d" % (vT0, vL))
    a("v_add_u32 v%d, s%d, v%d" % (vT0, sT0, vT0))
    a("ds_write_b128 v%d, %s offset:%d" % (vT0, vr(vACC, 4), A_LDS_RED))
    a("v_bfe_u32 v%d, v%d, 3, 1" % (vT1, vL))
    a("s_lshl_b32 s%d, s%d, 4" % (sT0, sW))
    a("v_lshlrev_b32 v%d, 3, v%d" % (vT1, vT1))
    a("v_add_u32 v%d, s%d, v%d" % (vT1, sT0, vT1))
    a("ds_write_b64 v%d, %s offset:%d" % (vT1, vr(vMX, 2), A_LDS_ML))
    a.wait_lg_all()
    a("s_barrier")
    a("s_cmp_ge_u32 s%d, 4" % sW)
    a("s_cbranch_scc1 %s" % done)
    a("v_lshlrev_b32 v%d, 2, v0" % vT0)
    a("v_bfe_u32 v%d, v0, 5, 1" % vT1)
    a("v_lshlrev_b32 v%d, 3, v%d" % (vT2, vT1))
    ml = 44
    ov = 76
    for w in range(16):
        a("ds_read_b64 %s, v%d offset:%d" % (vr(ml + 2 * w, 2), vT2, A_LDS_ML + w * 16))
    otags = [a("ds_read_b32 v%d, v%d offset:%d" % (ov + w, vT0, A_LDS_RED + w * 1024)) for w in range(16)]
    a("s_waitcnt lgkmcnt(15)")
    a("s_waitcnt lgkmcnt(0)")
    a.lgq = []
    M, Ls, Os, t = 16, 17, 18, 19
    a("v_max_f32 v%d, v%d, v%d" % (M, ml, ml + 2))
    for w in range(2, 16, 2):
        a("v_max3_f32 v%d, v%d, v%d, v%d" % (M, M, ml + 2 * w, ml + 2 * w + 2))
    a("v_mov_b32 v%d, 0" % Ls)
    a("v_mov_b32 v%d, 0" % Os)
    for w in range(16):
        a("v_sub_f32 v%d, v%d, v%d" % (t, ml + 2 * w, M))
        a("v_mul_f32 v%d, 0x%08x, v%d" % (t, LOG2E, t))
        a("v_exp_f32 v%d, v%d" % (t, t))
        a("v_fmac_f32 v%d, v%d, v%d" % (Ls, t, ml + 2 * w + 1))
        a("v_fmac_f32 v%d, v%d, v%d" % (Os, t, ov + w))
    a("v_bfe_u32 v%d, v0, 6, 2" % vT0)
    a("v_and_b32 v%d, 3, v0" % vT2)
    a("v_lshl_add_u32 v%d, v%d, 2, v%d" % (vT0, vT0, vT2))
    a("v_bfe_u32 v%d, v0, 2, 3" % vT2)
    a("v_lshl_add_u32 v%d, v%d, 3, v%d" % (vT0, vT0, vT2))
    a("v_lshl_add_u32 v%d, v%d, 7, v%d" % (vT0, vT1, vT0))
    a("v_lshlrev_b32 v%d, 2, v%d" % (vT0, vT0))
    a("s_lshl_b32 s%d, s%d, 10" % (sT0, sPIDX))
    a("buffer_store_dword v%d, v%d, %s, s%d offen" % (Os, vT0, sr(sWS, 4), sT0))
    a("v_lshlrev_b32 v%d, 3, v%d" % (vT1, vT1))
    a("s_lshl_b32 s%d, s%d, 4" % (sT0, sPIDX))
    a("s_add_u32 s%d, s%d, 0x%x" % (sT0, sT0, WS_STAT))
    a("buffer_store_dwordx2 %s, v%d, %s, s%d offen" % (vr(M, 2), vT1, sr(sWS, 4), sT0))
    a.label(done)
    a("s_endpgm")
    return descriptor(name, a.maxv + 1, a.maxs + 1)


O_LDS_W = 0
O_LDS_ACT = 32768
O_ACT_PITCH = 528
O_LDS = 32768 + 8 * O_ACT_PITCH


def kernel_O(a, name):
    kstart(a, name)
    done = name + "_done"
    prologue(a, 144, done)
    sWO, sWS = 28, 32
    sW, sHKV, sCS, sT0, sT1 = 36, 37, 38, 39, 40
    vL, vT0, vT1, vT2, vT3 = 1, 2, 3, 4, 5
    a("v_and_b32 v%d, 63, v0" % vL)
    a("v_lshrrev_b32 v%d, 6, v0" % vT0)
    a("v_readfirstlane_b32 s%d, v%d" % (sW, vT0))
    a("s_and_b32 s%d, s2, 7" % sT0)
    a("s_lshr_b32 s%d, s2, 3" % sCS)
    a("s_lshl_b32 s%d, s%d, 1" % (sHKV, sT0))
    a("s_cmp_ge_u32 s%d, 9" % sCS)
    a("s_cselect_b32 s%d, 9, 0" % sT0)
    a("s_cselect_b32 s%d, 1, 0" % sT1)
    a("s_sub_u32 s%d, s%d, s%d" % (sCS, sCS, sT0))
    a("s_add_u32 s%d, s%d, s%d" % (sHKV, sHKV, sT1))
    a("s_waitcnt lgkmcnt(0)")
    a("s_mul_i32 s%d, s%d, %d" % (sT0, sHKV, 256 * 1152))
    a("s_lshl_b32 s%d, s%d, 7" % (sT1, sCS))
    a("s_add_u32 s%d, s%d, s%d" % (sT0, sT0, sT1))
    a("s_sub_u32 s%d, 0x%x, s%d" % (sT1, 4096 * 1152, sT0))
    srd(a, sWO, P_WO, "s%d" % sT1, "s%d" % sT0)
    srd(a, sWS, P_WS, WS_SIZE)
    a("v_lshrrev_b32 v%d, 3, v%d" % (vT0, vL))
    a("s_lshl_b32 s%d, s%d, 4" % (sT0, sW))
    a("v_add_u32 v%d, s%d, v%d" % (vT0, sT0, vT0))
    a("v_mul_u32_u24 v%d, 1152, v%d" % (vT0, vT0))
    a("v_and_b32 v%d, 7, v%d" % (vT1, vL))
    a("v_lshl_add_u32 v%d, v%d, 4, v%d" % (vT0, vT1, vT0))
    a("s_lshl_b32 s%d, s%d, 11" % (sT0, sW))
    a("s_mov_b32 m0, s%d" % sT0)
    a("buffer_load_dwordx4 v%d, %s, 0 offen lds" % (vT0, sr(sWO, 4)))
    a("s_add_u32 s%d, s%d, 1024" % (sT0, sT0))
    a("s_mov_b32 m0, s%d" % sT0)
    a("s_mov_b32 s%d, %d" % (sT1, 8 * 1152))
    a("buffer_load_dwordx4 v%d, %s, s%d offen lds" % (vT0, sr(sWO, 4), sT1))
    a("v_lshrrev_b32 v%d, 7, v0" % vT0)
    a("v_lshlrev_b32 v%d, 4, v%d" % (vT1, vT0))
    a("v_add_lshl_u32 v%d, v%d, s%d, 1" % (vT1, vT1, sHKV))
    a("v_and_b32 v%d, 127, v0" % vT2)
    a("v_lshlrev_b32 v%d, 10, v%d" % (vT3, vT1))
    a("v_lshl_add_u32 v%d, v%d, 2, v%d" % (vT3, vT2, vT3))
    o = [8, 9, 10, 11]
    for s_ in range(2):
        for hh in range(2):
            a("buffer_load_dword v%d, v%d, %s, 0 offen offset:%d" % (o[s_ * 2 + hh], vT3, sr(sWS, 4), s_ * 1024 + hh * 512))
    st = 12
    a("v_lshlrev_b32 v%d, 4, v%d" % (vT1, vT1))
    a("s_mov_b32 s%d, 0x%x" % (sT0, WS_STAT))
    a("buffer_load_dwordx4 %s, v%d, %s, s%d offen" % (vr(st, 4), vT1, sr(sWS, 4), sT0))
    tg = a("buffer_load_dwordx4 %s, v%d, %s, s%d offen offset:16" % (vr(st + 4, 4), vT1, sr(sWS, 4), sT0))
    a("v_mul_u32_u24 v%d, %d, v%d" % (vT0, O_ACT_PITCH, vT0))
    a("v_lshl_add_u32 v%d, v%d, 1, v%d" % (vT0, vT2, vT0))
    a.wait_vm(tg)
    for hh in range(2):
        m0_, l0, m1, l1 = st + 2 * hh, st + 2 * hh + 1, st + 4 + 2 * hh, st + 5 + 2 * hh
        M, e0, e1, den, num, rc, q, er = 20, 21, 22, 23, 24, 25, 26, 27
        a("v_max_f32 v%d, v%d, v%d" % (M, m0_, m1))
        a("v_sub_f32 v%d, v%d, v%d" % (e0, m0_, M))
        a("v_sub_f32 v%d, v%d, v%d" % (e1, m1, M))
        a("v_mul_f32 v%d, 0x%08x, v%d" % (e0, LOG2E, e0))
        a("v_mul_f32 v%d, 0x%08x, v%d" % (e1, LOG2E, e1))
        a("v_exp_f32 v%d, v%d" % (e0, e0))
        a("v_exp_f32 v%d, v%d" % (e1, e1))
        a("v_mul_f32 v%d, v%d, v%d" % (den, e0, l0))
        a("v_fmac_f32 v%d, v%d, v%d" % (den, e1, l1))
        a("v_mul_f32 v%d, v%d, v%d" % (num, e0, o[hh]))
        a("v_fmac_f32 v%d, v%d, v%d" % (num, e1, o[2 + hh]))
        a("v_rcp_f32 v%d, v%d" % (rc, den))
        a("v_mul_f32 v%d, v%d, v%d" % (q, num, rc))
        a("v_cvt_pk_bf16_f32 v%d, v%d, v%d" % (q, q, q))
        a("ds_write_b16 v%d, v%d offset:%d" % (vT0, q, O_LDS_ACT + hh * 256))
    a.wait_all()
    a("s_barrier")
    a("s_cmp_ge_u32 s%d, 8" % sW)
    a("s_cbranch_scc1 %s" % done)
    a("v_and_b32 v%d, 7, v%d" % (vT0, vL))
    a("v_mul_u32_u24 v%d, %d, v%d" % (vT0, O_ACT_PITCH, vT0))
    a("v_lshrrev_b32 v%d, 4, v%d" % (vT1, vL))
    a("v_lshl_add_u32 v%d, v%d, 4, v%d" % (vT0, vT1, vT0))
    a("s_lshr_b32 s%d, s%d, 2" % (sT0, sW))
    a("s_lshl_b32 s%d, s%d, 8" % (sT1, sT0))
    a("v_add_u32 v%d, s%d, v%d" % (vT0, sT1, vT0))
    a("v_bfe_u32 v%d, v%d, 2, 2" % (vT2, vL))
    a("v_lshl_add_u32 v%d, v%d, 3, v%d" % (vT2, vT1, vT2))
    a("v_lshlrev_b32 v%d, 7, v%d" % (vT2, vT2))
    a("v_and_b32 v%d, 3, v%d" % (vT3, vL))
    a("v_lshl_add_u32 v%d, v%d, 3, v%d" % (vT2, vT3, vT2))
    a("s_lshl_b32 s%d, s%d, 14" % (sT0, sT0))
    a("s_and_b32 s%d, s%d, 3" % (sT1, sW))
    a("s_lshl_b32 s%d, s%d, 5" % (sT1, sT1))
    a("s_add_u32 s%d, s%d, s%d" % (sT0, sT0, sT1))
    a("v_add_u32 v%d, s%d, v%d" % (vT2, sT0, vT2))
    A0, B0, C = 8, 24, 40
    tg = []
    for s_ in range(4):
        a("ds_read_b128 %s, v%d offset:%d" % (vr(A0 + 4 * s_, 4), vT0, O_LDS_ACT + s_ * 64))
        a("ds_read_b64_tr_b16 %s, v%d offset:%d" % (vr(B0 + 4 * s_, 2), vT2, O_LDS_W + s_ * 4096))
        tg.append(a("ds_read_b64_tr_b16 %s, v%d offset:%d" % (vr(B0 + 4 * s_ + 2, 2), vT2, O_LDS_W + s_ * 4096 + 512)))
    for s_ in range(4):
        a.wait_lg(tg[s_])
        a("v_mfma_f32_16x16x32_bf16 %s, %s, %s, %s" % (vr(C, 4), vr(A0 + 4 * s_, 4), vr(B0 + 4 * s_, 4), "0" if s_ == 0 else vr(C, 4)))
    a("v_mul_u32_u24 v%d, %d, v%d" % (vT0, 4 * 2304, vT1))
    a("v_and_b32 v%d, 15, v%d" % (vT2, vL))
    a("v_lshl_add_u32 v%d, v%d, 2, v%d" % (vT0, vT2, vT0))
    a("s_lshl_b32 s%d, s%d, 8" % (sT0, sCS))
    a("s_and_b32 s%d, s%d, 3" % (sT1, sW))
    a("s_lshl_b32 s%d, s%d, 6" % (sT1, sT1))
    a("s_add_u32 s%d, s%d, s%d" % (sT0, sT0, sT1))
    a("s_add_u32 s%d, s%d, 0x%x" % (sT0, sT0, WS_ACC1))
    a("s_mov_b64 exec, 0xffffffff")
    for j in range(4):
        a("buffer_atomic_add_f32 v%d, v%d, %s, s%d offen offset:%d" % (C + j, vT0, sr(sWS, 4), sT0, 0) if j == 0 else
          "buffer_atomic_add_f32 v%d, v%d, %s, s%d offen offset:%d" % (C + j, vT0, sr(sWS, 4), sT0, 2304 * j) if 2304 * j < 4096 else
          "buffer_atomic_add_f32 v%d, v%d, %s, s%d offen offset:%d" % (C + j, vT2, sr(sWS, 4), sT0, 2304 * (j - 2)))
        if j == 1:
            a("v_add_u32 v%d, %d, v%d" % (vT2, 4608, vT0))
    a.label(done)
    a("s_endpgm")
    return descriptor(name, a.maxv + 1, a.maxs + 1)


G_LDS_ACT = 0
G_ACT_PITCH = 1168
G_LDS_RED = 8 * G_ACT_PITCH
G_LDS_WG = 15616
G_LDS = G_LDS_WG + 73728


def load_h_row(a, xs, aa, vL, vT0, sX, sWS, sRow2304):
    a("v_lshlrev_b32 v%d, 1, v%d" % (vT0, vL))
    for e in range(9):
        a("buffer_load_ushort v%d, v%d, %s, 0 offen offset:%d" % (xs[e], vT0, sr(sX, 4), e * 128))
    a("v_lshlrev_b32 v%d, 2, v%d" % (vT0, vL))
    t = None
    for e in range(9):
        t = a("buffer_load_dword v%d, v%d, %s, s%d offen offset:%d" % (aa[e], vT0, sr(sWS, 4), sRow2304, e * 256))
    return t


def kernel_GU(a, name):
    kstart(a, name)
    done = name + "_done"
    prologue(a, 144, done)
    sWT, sWS, sX = 28, 32, 36
    sW, sJ, sT0, sT1, sT2 = 40, 41, 42, 43, 44
    vL, vT0, vT1, vT2, vT3 = 1, 2, 3, 4, 5
    a("v_and_b32 v%d, 63, v0" % vL)
    a("v_lshrrev_b32 v%d, 6, v0" % vT0)
    a("v_readfirstlane_b32 s%d, v%d" % (sW, vT0))
    a("s_and_b32 s%d, s2, 7" % sT0)
    a("s_lshr_b32 s%d, s2, 3" % sT1)
    a("s_mul_i32 s%d, s%d, 18" % (sJ, sT0))
    a("s_add_u32 s%d, s%d, s%d" % (sJ, sJ, sT1))
    a("s_waitcnt lgkmcnt(0)")
    srd(a, sWS, P_WS, WS_SIZE)
    a("s_cmp_ge_u32 s%d, 8" % sW)
    a("s_cbranch_scc1 %s_dma" % name)
    a("s_mul_i32 s%d, s%d, 1152" % (sT0, sW))
    srd(a, sX, P_X, 1152, "s%d" % sT0)
    a("s_mul_i32 s%d, s%d, 2304" % (sT0, sW))
    a("s_add_u32 s%d, s%d, 0x%x" % (sT0, sT0, WS_ACC1))
    xs = list(range(8, 17))
    aa = list(range(17, 26))
    tg = load_h_row(a, xs, aa, vL, vT0, sX, sWS, sT0)
    a.wait_vm(tg)
    for e in range(9):
        a("v_lshlrev_b32 v%d, 16, v%d" % (xs[e], xs[e]))
        bf16r(a, aa[e], aa[e])
        a("v_add_f32 v%d, v%d, v%d" % (xs[e], xs[e], aa[e]))
        bf16r(a, xs[e], xs[e])
    layernorm9(a, xs, 26)
    a("s_mul_i32 s%d, s%d, %d" % (sT0, sW, G_ACT_PITCH))
    a("v_lshlrev_b32 v%d, 1, v%d" % (vT0, vL))
    a("v_add_u32 v%d, s%d, v%d" % (vT0, sT0, vT0))
    for e in range(9):
        a("v_cvt_pk_bf16_f32 v%d, v%d, v%d" % (xs[e], xs[e], xs[e]))
        a("ds_write_b16 v%d, v%d offset:%d" % (vT0, xs[e], G_LDS_ACT + e * 128))
    a("s_branch %s_join" % name)
    a.label("%s_dma" % name)
    a("s_cmp_ge_u32 s%d, 12" % sW)
    a("s_cselect_b32 s%d, s%d, s%d" % (sT0, P_WU, P_WG))
    a("s_cselect_b32 s%d, s%d, s%d" % (sT1, P_WU + 1, P_WG + 1))
    a("s_lshl_b32 s%d, s%d, 6" % (sT2, sJ))
    a("s_add_u32 s%d, s%d, s%d" % (sWT, sT0, sT2))
    a("s_addc_u32 s%d, s%d, 0" % (sWT + 1, sT1))
    a("s_sub_u32 s%d, 0x%x, s%d" % (sWT + 2, 576 * 9216, sT2))
    a("s_mov_b32 s%d, 0x00020000" % (sWT + 3))
    a("s_and_b32 s%d, s%d, 3" % (sT0, sW))
    a("s_mul_i32 s%d, s%d, 144" % (sT0, sT0))
    a("v_lshrrev_b32 v%d, 2, v%d" % (vT0, vL))
    a("v_add_u32 v%d, s%d, v%d" % (vT0, sT0, vT0))
    a("v_mul_u32_u24 v%d, 9216, v%d" % (vT0, vT0))
    a("v_and_b32 v%d, 3, v%d" % (vT1, vL))
    a("v_lshl_add_u32 v%d, v%d, 4, v%d" % (vT0, vT1, vT0))
    a("s_sub_u32 s%d, s%d, 8" % (sT0, sW))
    a("s_mul_i32 s%d, s%d, 9216" % (sT0, sT0))
    a("s_add_u32 s%d, s%d, %d" % (sT0, sT0, G_LDS_WG))
    a("s_mov_b32 s%d, 0" % sT1)
    for i in range(9):
        a("s_mov_b32 m0, s%d" % sT0)
        a("buffer_load_dwordx4 v%d, %s, s%d offen lds" % (vT0, sr(sWT, 4), sT1))
        if i < 8:
            a("s_add_u32 s%d, s%d, 1024" % (sT0, sT0))
            a("s_add_u32 s%d, s%d, %d" % (sT1, sT1, 16 * 9216))
    a.label("%s_join" % name)
    a.wait_all()
    a("s_barrier")
    a("s_cmp_ge_u32 s%d, 12" % sW)
    a("s_cbranch_scc1 %s_bar2" % name)
    a("v_and_b32 v%d, 7, v%d" % (vT0, vL))
    a("v_mul_u32_u24 v%d, %d, v%d" % (vT0, G_ACT_PITCH, vT0))
    a("v_lshrrev_b32 v%d, 4, v%d" % (vT1, vL))
    a("v_lshl_add_u32 v%d, v%d, 4, v%d" % (vT0, vT1, vT0))
    a("s_lshr_b32 s%d, s%d, 2" % (sT0, sW))
    a("s_mul_i32 s%d, s%d, 384" % (sT1, sT0))
    a("v_add_u32 v%d, s%d, v%d" % (vT0, sT1, vT0))
    a("v_bfe_u32 v%d, v%d, 2, 2" % (vT2, vL))
    a("v_lshl_add_u32 v%d, v%d, 3, v%d" % (vT2, vT1, vT2))
    a("v_lshlrev_b32 v%d, 6, v%d" % (vT2, vT2))
    a("v_and_b32 v%d, 3, v%d" % (vT3, vL))
    a("v_lshl_add_u32 v%d, v%d, 3, v%d" % (vT2, vT3, vT2))
    a("s_mul_i32 s%d, s%d, %d" % (sT0, sT0, 192 * 64))
    a("s_and_b32 s%d, s%d, 1" % (sT1, sW))
    a("s_lshl_b32 s%d, s%d, 5" % (sT1, sT1))
    a("s_add_u32 s%d, s%d, s%d" % (sT0, sT0, sT1))
    a("s_bitcmp1_b32 s%d, 1" % sW)
    a("s_cselect_b32 s%d, %d, 0" % (sT1, 36864))
    a("s_add_u32 s%d, s%d, %d" % (sT0, sT0, G_LDS_WG))
    a("s_add_u32 s%d, s%d, s%d" % (sT0, sT0, sT1))
    a("v_add_u32 v%d, s%d, v%d" % (vT2, sT0, vT2))
    A0, B0, C = 8, 32, 56
    tg = []
    for s_ in range(6):
        a("ds_read_b128 %s, v%d offset:%d" % (vr(A0 + 4 * s_, 4), vT0, G_LDS_ACT + s_ * 64))
        a("ds_read_b64_tr_b16 %s, v%d offset:%d" % (vr(B0 + 4 * s_, 2), vT2, s_ * 2048))
        tg.append(a("ds_read_b64_tr_b16 %s, v%d offset:%d" % (vr(B0 + 4 * s_ + 2, 2), vT2, s_ * 2048 + 256)))
    for s_ in range(6):
        a.wait_lg(tg[s_])
        a("v_mfma_f32_16x16x32_bf16 %s, %s, %s, %s" % (vr(C, 4), vr(A0 + 4 * s_, 4), vr(B0 + 4 * s_, 4), "0" if s_ == 0 else vr(C, 4)))
    a("v_lshlrev_b32 v%d, 8, v%d" % (vT0, vT1))
    a("v_and_b32 v%d, 15, v%d" % (vT2, vL))
    a("v_lshl_add_u32 v%d, v%d, 2, v%d" % (vT0, vT2, vT0))
    a("s_lshl_b32 s%d, s%d, 9" % (sT0, sW))
    a("v_add_u32 v%d, s%d, v%d" % (vT0, sT0, vT0))
    a("s_mov_b64 exec, 0xffffffff")
    for j in range(4):
        a("ds_write_b32 v%d, v%d offset:%d" % (vT0, C + j, G_LDS_RED + j * 64))
    a("s_mov_b64 exec, -1")
    a.wait_lg_all()
    a.label("%s_bar2" % name)
    a("s_barrier")
    a("s_cmp_ge_u32 s%d, 4" % sW)
    a("s_cbranch_scc1 %s" % done)
    a("v_lshrrev_b32 v%d, 5, v0" % vT0)
    a("v_bfe_u32 v%d, v0, 4, 1" % vT1)
    a("v_lshlrev_b32 v%d, 9, v%d" % (vT1, vT1))
    a("v_lshl_add_u32 v%d, v%d, 6, v%d" % (vT1, vT0, vT1))
    a("v_and_b32 v%d, 15, v0" % vT2)
    a("v_lshl_add_u32 v%d, v%d, 2, v%d" % (vT1, vT2, vT1))
    g_ = [8, 9, 10]
    u_ = [11, 12, 13]
    for kp in range(3):
        a("ds_read_b32 v%d, v%d offset:%d" % (g_[kp], vT1, G_LDS_RED + kp * 2048))
        a("ds_read_b32 v%d, v%d offset:%d" % (u_[kp], vT1, G_LDS_RED + kp * 2048 + 1024))
    a("v_mul_u32_u24 v%d, 9216, v%d" % (vT0, vT0))
    a("v_and_b32 v%d, 31, v0" % vT2)
    a("v_lshl_add_u32 v%d, v%d, 1, v%d" % (vT0, vT2, vT0))
    a("s_lshl_b32 s%d, s%d, 6" % (sT0, sJ))
    a("s_add_u32 s%d, s%d, 0x%x" % (sT0, sT0, WS_T))
    a.wait_lg_all()
    G, U, y, t = 8, 11, 14, 15
    a("v_add_f32 v%d, v%d, v%d" % (G, g_[0], g_[1]))
    a("v_add_f32 v%d, v%d, v%d" % (G, G, g_[2]))
    a("v_add_f32 v%d, v%d, v%d" % (U, u_[0], u_[1]))
    a("v_add_f32 v%d, v%d, v%d" % (U, U, u_[2]))
    bf16r(a, G, G)
    bf16r(a, U, U)
    gelu(a, G, y, t)
    bf16r(a, G, G)
    a("v_mul_f32 v%d, v%d, v%d" % (G, G, U))
    a("v_cvt_pk_bf16_f32 v%d, v%d, v%d" % (G, G, G))
    a("buffer_store_short v%d, v%d, %s, s%d offen" % (G, vT0, sr(sWS, 4), sT0))
    a.label(done)
    a("s_endpgm")
    return descriptor(name, a.maxv + 1, a.maxs + 1)


def gelu(a, x, y, t):
    import math
    c = -2.0 * math.sqrt(2.0 / math.pi) * 1.4426950408889634
    a("v_mul_f32 v%d, v%d, v%d" % (t, x, x))
    a("v_mul_f32 v%d, %s, v%d" % (t, f32(0.044715), t))
    a("v_fma_f32 v%d, v%d, v%d, v%d" % (y, t, x, x))
    a("v_mul_f32 v%d, %s, v%d" % (y, f32(c), y))
    a("v_exp_f32 v%d, v%d" % (y, y))
    a("v_add_f32 v%d, 1.0, v%d" % (y, y))
    a("v_rcp_f32 v%d, v%d" % (y, y))
    a("v_mul_f32 v%d, v%d, v%d" % (x, x, y))


D_LDS_RED = 0
D_LDS_W = 4096
D_LDS = D_LDS_W + 73728 + 512


def kernel_D(a, name):
    kstart(a, name)
    done = name + "_done"
    prologue(a, 72, done)
    sWD, sWS, sX, sO = 28, 32, 36, 40
    sW, sJ, sT0, sT1 = 44, 45, 46, 47
    vL, vT0, vT1, vT2, vT3 = 1, 2, 3, 4, 5
    a("v_and_b32 v%d, 63, v0" % vL)
    a("v_lshrrev_b32 v%d, 6, v0" % vT0)
    a("v_readfirstlane_b32 s%d, v%d" % (sW, vT0))
    a("s_and_b32 s%d, s2, 7" % sT0)
    a("s_lshr_b32 s%d, s2, 3" % sT1)
    a("s_mul_i32 s%d, s%d, 9" % (sJ, sT0))
    a("s_add_u32 s%d, s%d, s%d" % (sJ, sJ, sT1))
    a("s_waitcnt lgkmcnt(0)")
    a("s_lshl_b32 s%d, s%d, 4" % (sT0, sJ))
    a("s_sub_u32 s%d, 0x%x, s%d" % (sT1, 4608 * 1152, sT0))
    srd(a, sWD, P_WD, "s%d" % sT1, "s%d" % sT0)
    srd(a, sWS, P_WS, WS_SIZE)
    srd(a, sX, P_X, 9216)
    srd(a, sO, P_OUT, 9216)
    a("s_mul_i32 s%d, s%d, 288" % (sT0, sW))
    a("v_add_u32 v%d, s%d, v%d" % (vT0, sT0, vL))
    a("v_mul_u32_u24 v%d, 1152, v%d" % (vT0, vT0))
    a("s_lshl_b32 s%d, s%d, 4" % (sT0, sT0))
    a("s_add_u32 s%d, s%d, %d" % (sT0, sT0, D_LDS_W))
    a("s_mov_b32 s%d, 0" % sT1)
    for i in range(5):
        a("s_mov_b32 m0, s%d" % sT0)
        if i == 4:
            a("s_mov_b64 exec, 0xffffffff")
        a("buffer_load_dwordx4 v%d, %s, s%d offen lds" % (vT0, sr(sWD, 4), sT1))
        if i < 4:
            a("s_add_u32 s%d, s%d, 1024" % (sT0, sT0))
            a("s_add_u32 s%d, s%d, %d" % (sT1, sT1, 64 * 1152))
    a("s_mov_b64 exec, -1")
    a("v_and_b32 v%d, 7, v%d" % (vT0, vL))
    a("v_mul_u32_u24 v%d, 9216, v%d" % (vT0, vT0))
    a("v_lshrrev_b32 v%d, 4, v%d" % (vT1, vL))
    a("v_lshl_add_u32 v%d, v%d, 4, v%d" % (vT0, vT1, vT0))
    a("s_mul_i32 s%d, s%d, 576" % (sT0, sW))
    a("s_add_u32 s%d, s%d, 0x%x" % (sT0, sT0, WS_T))
    A0, B0, C = 8, 44, 80
    at = [a("buffer_load_dwordx4 %s, v%d, %s, s%d offen offset:%d" % (vr(A0 + 4 * s_, 4), vT0, sr(sWS, 4), sT0, s_ * 64)) for s_ in range(9)]
    X, AC = 84, 85
    a("v_bfe_u32 v%d, v0, 3, 3" % vT2)
    a("v_mul_u32_u24 v%d, 576, v%d" % (vT2, vT2))
    a("v_and_b32 v%d, 7, v0" % vT3)
    a("v_add_u32 v%d, v%d, v%d" % (vT2, vT2, vT3))
    a("s_lshl_b32 s%d, s%d, 3" % (sT1, sJ))
    a("v_add_u32 v%d, s%d, v%d" % (vT2, sT1, vT2))
    a("v_lshlrev_b32 v%d, 1, v%d" % (6, vT2))
    a("v_lshlrev_b32 v%d, 2, v%d" % (7, vT2))
    a("buffer_load_ushort v%d, v6, %s, 0 offen" % (X, sr(sX, 4)))
    a("s_mov_b32 s%d, 0x%x" % (sT1, WS_ACC1))
    a("buffer_load_dword v%d, v7, %s, s%d offen" % (AC, sr(sWS, 4), sT1))
    a("v_bfe_u32 v%d, v%d, 2, 2" % (vT2, vL))
    a("v_lshl_add_u32 v%d, v%d, 3, v%d" % (vT2, vT1, vT2))
    a("v_lshlrev_b32 v%d, 4, v%d" % (vT2, vT2))
    a("v_and_b32 v%d, 1, v%d" % (vT3, vL))
    a("v_lshl_add_u32 v%d, v%d, 3, v%d" % (vT2, vT3, vT2))
    a("s_mul_i32 s%d, s%d, %d" % (sT0, sW, 288 * 16))
    a("s_add_u32 s%d, s%d, %d" % (sT0, sT0, D_LDS_W))
    a("v_add_u32 v%d, s%d, v%d" % (vT2, sT0, vT2))
    a.wait_vm(at[0] - 1)
    tg = []
    for s_ in range(9):
        a("ds_read_b64_tr_b16 %s, v%d offset:%d" % (vr(B0 + 4 * s_, 2), vT2, s_ * 512))
        tg.append(a("ds_read_b64_tr_b16 %s, v%d offset:%d" % (vr(B0 + 4 * s_ + 2, 2), vT2, s_ * 512 + 64)))
    for s_ in range(9):
        a.wait_lg(tg[s_])
        a.wait_vm(at[s_])
        a("v_mfma_f32_16x16x32_bf16 %s, %s, %s, %s" % (vr(C, 4), vr(A0 + 4 * s_, 4), vr(B0 + 4 * s_, 4), "0" if s_ == 0 else vr(C, 4)))
    a("v_lshlrev_b32 v%d, 7, v%d" % (vT0, vT1))
    a("v_and_b32 v%d, 7, v%d" % (vT2, vL))
    a("v_lshl_add_u32 v%d, v%d, 2, v%d" % (vT0, vT2, vT0))
    a("s_lshl_b32 s%d, s%d, 8" % (sT0, sW))
    a("v_add_u32 v%d, s%d, v%d" % (vT0, sT0, vT0))
    a("s_mov_b64 exec, 0xffffffff")
    for j in range(4):
        a("ds_write_b32 v%d, v%d offset:%d" % (vT0, C + j, D_LDS_RED + j * 32))
    a("s_mov_b64 exec, -1")
    a.wait_lg_all()
    a("s_barrier")
    a("s_cmp_ge_u32 s%d, 1" % sW)
    a("s_cbranch_scc1 %s" % done)
    a("v_lshlrev_b32 v%d, 2, v0" % vT0)
    rr = list(range(8, 24))
    tags = [a("ds_read_b32 v%d, v%d offset:%d" % (rr[w], vT0, D_LDS_RED + w * 256)) for w in range(16)]
    a.wait_vm_all()
    a("v_lshlrev_b32 v%d, 16, v%d" % (X, X))
    bf16r(a, AC, AC)
    a("v_add_f32 v%d, v%d, v%d" % (X, X, AC))
    bf16r(a, X, X)
    a.wait_lg(tags[1])
    a("v_add_f32 v%d, v%d, v%d" % (rr[0], rr[0], rr[1]))
    for w in range(2, 16):
        a.wait_lg(tags[w])
        a("v_add_f32 v%d, v%d, v%d" % (rr[0], rr[0], rr[w]))
    bf16r(a, rr[0], rr[0])
    a("v_add_f32 v%d, v%d, v%d" % (X, X, rr[0]))
    a("v_cvt_pk_bf16_f32 v%d, v%d, v%d" % (X, X, X))
    a("buffer_store_short v%d, v6, %s, 0 offen" % (X, sr(sO, 4)))
    a.label(done)
    a("s_endpgm")
    return descriptor(name, a.maxv + 1, a.maxs + 1)


HEADER = open("cdna_kernels/%s.s.ref" % NAME).read().split("; Override launch")[0]


def main(out):
    a = Asm()
    hdr = HEADER
    hdr += "; @launch kernel=attn_kernel grid=(256,1,1) block=(1024,1,1) lds=%d\n" % A_LDS
    hdr += "; @launch kernel=oproj_kernel grid=(144,1,1) block=(1024,1,1) lds=%d\n" % O_LDS
    hdr += "; @launch kernel=gateup_kernel grid=(144,1,1) block=(1024,1,1) lds=%d\n" % G_LDS
    hdr += "; @launch kernel=down_kernel grid=(72,1,1) block=(1024,1,1) lds=%d\n" % D_LDS
    hdr += '.amdgcn_target "amdgcn-amd-amdhsa--gfx950"\n.text\n'
    for fn, nm in ((kernel_A, "attn_kernel"), (kernel_O, "oproj_kernel"), (kernel_GU, "gateup_kernel"), (kernel_D, "down_kernel")):
        d = fn(a, nm)
        a.raw(d)
    open(out, "w").write(hdr + a.text())


if __name__ == "__main__":
    main(sys.argv[1] if len(sys.argv) > 1 else "cdna_kernels/%s.s" % NAME)
```

```python
import sys, struct, math
from asmlib import Asm, vr, sr

NAME = "sequential_preLN__gqa_block_cached__geglu_ffn__decode"
KNAME = NAME + "_kernel"

LOG2E = 0x3FB8AA3B
SCALE = 0x3DB504F3
INV576 = struct.unpack("<I", struct.pack("<f", 1.0 / 576.0))[0]
EPS = struct.unpack("<I", struct.pack("<f", 1e-5))[0]

WS_Q = 0x0
WS_PART = 0x20000
WS_STAT = 0xA0000
WS_EPOCH = 0xA2800
WS_Z = 0xA2000
WS_F2 = 0xA3000
WS_CLR = 0xB0000
WS_ACC1 = 0xB0000
WS_T = 0xB4800
WS_P = 0xC6800
WS_SIZE = 0x200000
WS_STAMP = 0x100000

P_X, P_K, P_V, P_WQ, P_WO, P_BX, P_WG, P_WU, P_WD, P_OUT, P_DBG, P_WS = [4 + 2 * i for i in range(12)]
DPP = " row_mask:0xf bank_mask:0xf"

L_CNT = 0
L_TAG = 16
L_ML = 64
L_QS = 512
L_ACT = 1024
ACT_PITCH = 1168
O_ACT_PITCH = 528
L_RED = 10368
L_WQ = 28800
L_W = 47360
L_WO = L_W
L_WG = L_W + 32768
L_WU = L_WG + 36864
LDS_BYTES = L_WU + 36864

SPIN_MAX = 200000

OPT = dict(n0d=126, n0n=122, stamp=False, npre=4, qdbg=False, nowdma=False, noclr=False, wqnt=False)


def f32(x):
    return "0x%08x" % struct.unpack("<I", struct.pack("<f", x))[0]


def set_exec(a, m):
    a("s_mov_b32 exec_lo, 0x%x" % (m & 0xffffffff))
    a("s_mov_b32 exec_hi, 0x%x" % (m >> 32))


def srd(a, d, ptr, nbytes, off=None):
    if off is None:
        a("s_mov_b32 s%d, s%d" % (d, ptr))
        a("s_mov_b32 s%d, s%d" % (d + 1, ptr + 1))
    else:
        a("s_add_u32 s%d, s%d, %s" % (d, ptr, off))
        a("s_addc_u32 s%d, s%d, 0" % (d + 1, ptr + 1))
    a("s_mov_b32 s%d, %s" % (d + 2, nbytes if isinstance(nbytes, str) else "0x%x" % nbytes))
    a("s_mov_b32 s%d, 0x00020000" % (d + 3))


def allreduce(a, v, t, op="add", lo=True, hi=True):
    ins = "v_%s_f32" % op
    if lo:
        for m in ("quad_perm:[1,0,3,2]", "quad_perm:[2,3,0,1]", "row_half_mirror", "row_mirror"):
            a("%s_dpp v%d, v%d, v%d %s%s" % (ins, v, v, v, m, DPP))
    if hi:
        for sw in ("v_permlane16_swap_b32", "v_permlane32_swap_b32"):
            a("v_mov_b32 v%d, v%d" % (t, v))
            a("%s v%d, v%d" % (sw, v, t))
            a("%s v%d, v%d, v%d" % (ins, v, v, t))


def bf16r(a, d, s):
    a("v_cvt_pk_bf16_f32 v%d, v%d, v%d" % (d, s, s))
    a("v_lshlrev_b32 v%d, 16, v%d" % (d, d))


def layernorm9(a, xs, t0):
    s, t, mean, sd, rc, e = t0, t0 + 1, t0 + 2, t0 + 3, t0 + 4, t0 + 5
    a("v_add_f32 v%d, v%d, v%d" % (s, xs[0], xs[1]))
    for i in range(2, 9):
        a("v_add_f32 v%d, v%d, v%d" % (s, s, xs[i]))
    allreduce(a, s, t)
    a("v_mul_f32 v%d, 0x%08x, v%d" % (mean, INV576, s))
    a("v_sub_f32 v%d, v%d, v%d" % (t, xs[0], mean))
    a("v_mul_f32 v%d, v%d, v%d" % (s, t, t))
    for i in range(1, 9):
        a("v_sub_f32 v%d, v%d, v%d" % (t, xs[i], mean))
        a("v_fmac_f32 v%d, v%d, v%d" % (s, t, t))
    allreduce(a, s, t)
    a("v_mul_f32 v%d, 0x%08x, v%d" % (s, INV576, s))
    bf16r(a, s, s)
    a("v_add_f32 v%d, 0x%08x, v%d" % (s, EPS, s))
    bf16r(a, s, s)
    a("v_sqrt_f32 v%d, v%d" % (sd, s))
    a("v_rcp_f32 v%d, v%d" % (rc, sd))
    a("v_fma_f32 v%d, -v%d, v%d, v%d" % (e, sd, sd, s))
    a("v_mul_f32 v%d, 0.5, v%d" % (rc, rc))
    a("v_fmac_f32 v%d, v%d, v%d" % (sd, e, rc))
    bf16r(a, sd, sd)
    bf16r(a, mean, mean)
    a("v_rcp_f32 v%d, v%d" % (rc, sd))
    for i in range(9):
        x = xs[i]
        a("v_sub_f32 v%d, v%d, v%d" % (x, x, mean))
        bf16r(a, x, x)
        a("v_mul_f32 v%d, v%d, v%d" % (t, x, rc))
        a("v_fma_f32 v%d, -v%d, v%d, v%d" % (e, t, sd, x))
        a("v_fma_f32 v%d, v%d, v%d, v%d" % (x, e, rc, t))


def gelu(a, x, y, t):
    c = -2.0 * math.sqrt(2.0 / math.pi) * 1.4426950408889634
    a("v_mul_f32 v%d, v%d, v%d" % (t, x, x))
    a("v_mul_f32 v%d, %s, v%d" % (t, f32(0.044715), t))
    a("v_fma_f32 v%d, v%d, v%d, v%d" % (y, t, x, x))
    a("v_mul_f32 v%d, %s, v%d" % (y, f32(c), y))
    a("v_exp_f32 v%d, v%d" % (y, y))
    a("v_add_f32 v%d, 1.0, v%d" % (y, y))
    a("v_rcp_f32 v%d, v%d" % (y, y))
    a("v_mul_f32 v%d, v%d, v%d" % (x, x, y))


sK, sV, sWS, sDBG, sA, sB_ = 28, 32, 36, 40, 44, 48
sW, sHKV, sBB, sHALF, sLID = 52, 53, 54, 55, 56
sT0, sT1, sT2, sT3 = 57, 58, 59, 60
sCUR0, sCUR1, sNEW, sOFF = 61, 62, 63, 64
sHI, sL2E, sSPIN = 65, 66, 1
sQD = 68
sR0, sR1 = 84, 85
sTAG = 3
sNU = 0
sEPO = 67
sST = 86
NSTAMP = 8

vL, vKO, vVO, vT0, vT1, vT2, vT3 = 1, 2, 3, 4, 5, 6, 7
vM, vQ, vACC, vB, vC = 8, 12, 16, 20, 28
vMX, vLS, vNM, vIDX = 44, 45, 46, 47
vS = 48
vRING = 56
vZ, vONE = 120, 121


def stamp(a, i, tail=False):
    if OPT["stamp"] and not (tail and OPT["qdbg"]):
        a.raw("    s_memrealtime s[%d:%d]" % (sST + 2 * i, sST + 1 + 2 * i))
        a.maxs = max(a.maxs, sST + 1 + 2 * i)


def gen():
    a = Asm()
    name = KNAME
    a.raw(".globl %s\n.p2align 8\n.type %s,@function\n%s:" % (name, name, name))
    a("s_cmp_ge_u32 s2, 256")
    a("s_cbranch_scc1 L_end")
    a("s_load_dwordx16 s[4:19], s[0:1], 0")
    a("s_load_dwordx8 s[20:27], s[0:1], 64")
    if OPT["stamp"]:
        for i in range(NSTAMP):
            a("s_mov_b32 s%d, 0" % (sST + 2 * i))
    stamp(a, 0)
    a("v_and_b32 v%d, 63, v0" % vL)
    a("v_lshrrev_b32 v%d, 6, v0" % vT0)
    a("v_readfirstlane_b32 s%d, v%d" % (sW, vT0))
    a("s_and_b32 s%d, s2, 7" % sT0)
    a("s_lshr_b32 s%d, s2, 3" % sT1)
    a("s_lshl_b32 s%d, s%d, 1" % (sHKV, sT0))
    a("s_and_b32 s%d, s%d, 1" % (sT0, sT1))
    a("s_add_u32 s%d, s%d, s%d" % (sHKV, sHKV, sT0))
    a("s_lshr_b32 s%d, s%d, 1" % (sBB, sT1))
    a("s_and_b32 s%d, s%d, 7" % (sBB, sBB))
    a("s_lshr_b32 s%d, s%d, 4" % (sHALF, sT1))
    a("s_lshl_b32 s%d, s%d, 4" % (sLID, sHKV))
    a("s_lshl_b32 s%d, s%d, 1" % (sT0, sBB))
    a("s_add_u32 s%d, s%d, s%d" % (sLID, sLID, sT0))
    a("s_add_u32 s%d, s%d, s%d" % (sLID, sLID, sHALF))
    a("s_mov_b32 s%d, 0xffff0000" % sHI)
    a("s_mov_b32 s%d, 0x%08x" % (sL2E, LOG2E))
    a("v_bfe_u32 v%d, v%d, 2, 2" % (vT0, vL))
    a("v_lshlrev_b32 v%d, 8, v%d" % (vKO, vT0))
    a("v_lshrrev_b32 v%d, 4, v%d" % (vT1, vL))
    a("v_lshl_add_u32 v%d, v%d, 6, v%d" % (vKO, vT1, vKO))
    a("v_and_b32 v%d, 3, v%d" % (vT0, vL))
    a("v_lshl_add_u32 v%d, v%d, 4, v%d" % (vKO, vT0, vKO))
    a("v_lshlrev_b32 v%d, 4, v%d" % (vVO, vL))
    a("v_and_b32 v%d, 1, v%d" % (vT0, vL))
    a("v_lshlrev_b32 v%d, 4, v%d" % (vT0, vT0))
    a("v_mov_b32 v%d, 0xffff" % vT2)
    a("v_lshlrev_b32 v%d, v%d, v%d" % (vT2, vT0, vT2))
    a("v_bfe_u32 v%d, v%d, 1, 2" % (vT0, vL))
    for j in range(4):
        a("v_cmp_eq_u32 vcc, %d, v%d" % (j, vT0))
        a("v_cndmask_b32 v%d, 0, v%d, vcc" % (vM + j, vT2))
    a("v_mov_b32 v%d, 0" % vZ)
    a("v_mov_b32 v%d, 1" % vONE)
    a("s_waitcnt lgkmcnt(0)")
    a("s_and_b32 s%d, s%d, 1" % (sT0, sHKV))
    a("s_lshl_b32 s%d, s%d, 1" % (sT1, sBB))
    a("s_add_u32 s%d, s%d, s%d" % (sT0, sT0, sT1))
    a("s_cmp_lt_u32 s%d, 11" % sT0)
    a("s_cselect_b32 s%d, %d, %d" % (sT1, 128 - OPT["n0d"], 128 - OPT["n0n"]))
    a("s_cmp_lt_u32 s%d, 2" % sT0)
    a("s_cselect_b32 s%d, 0, s%d" % (sT1, sT1))
    a("s_sub_u32 s%d, 128, s%d" % (sT1, sT1))
    a("s_sub_u32 s%d, 256, s%d" % (sT2, sT1))
    a("s_cmp_eq_u32 s%d, 0" % sHALF)
    a("s_cselect_b32 s%d, s%d, s%d" % (sNU, sT1, sT2))
    a("s_cselect_b32 s%d, 0, s%d" % (sT1, sT1))
    a("s_lshl_b32 s%d, s%d, 4" % (sT0, sBB))
    a("s_add_u32 s%d, s%d, s%d" % (sT0, sT0, sHKV))
    a("s_lshl_b32 s%d, s%d, 20" % (sT0, sT0))
    a("s_lshl_b32 s%d, s%d, 12" % (sT1, sT1))
    a("s_add_u32 s%d, s%d, s%d" % (sT0, sT0, sT1))
    a("s_lshl_b32 s%d, s%d, 12" % (sT2, sNU))
    srd(a, sK, P_K, "s%d" % sT2, "s%d" % sT0)
    srd(a, sV, P_V, "s%d" % sT2, "s%d" % sT0)
    srd(a, sWS, P_WS, WS_SIZE)
    srd(a, sDBG, P_DBG, 256)
    a("s_load_dword s%d, s[%d:%d], 0x%x" % (sEPO, P_WS, P_WS + 1, WS_EPOCH))
    a("s_mov_b32 s%d, s%d" % (sCUR0, sW))
    a("s_add_u32 s%d, s%d, 16" % (sCUR1, sW))

    xs = list(range(16, 25))
    a("s_cmp_ge_u32 s%d, 8" % sW)
    a("s_cbranch_scc1 L_crit_hi")
    a("s_mul_i32 s%d, s%d, 1152" % (sT0, sW))
    srd(a, sA, P_X, 1152, "s%d" % sT0)
    a("v_lshlrev_b32 v%d, 1, v%d" % (vT0, vL))
    for e in range(9):
        a("buffer_load_ushort v%d, v%d, %s, 0 offen offset:%d" % (xs[e], vT0, sr(sA, 4), e * 128))
    a("s_branch L_crit_done")
    a.label("L_crit_hi")
    a("s_cmp_ge_u32 s%d, 14" % sW)
    a("s_cbranch_scc1 L_crit_hi2")
    a("s_lshl_b32 s%d, s%d, 5" % (sT0, sLID))
    a("s_sub_u32 s%d, 0x%x, s%d" % (sT1, 576 * 8192, sT0))
    srd(a, sA, P_WQ, "s%d" % sT1, "s%d" % sT0)
    a("s_sub_u32 s%d, s%d, 8" % (sT0, sW))
    a("s_mul_i32 s%d, s%d, 96" % (sT0, sT0))
    a("v_lshrrev_b32 v%d, 1, v%d" % (vT0, vL))
    a("v_add_u32 v%d, s%d, v%d" % (vT0, sT0, vT0))
    a("v_lshlrev_b32 v%d, 13, v%d" % (vT0, vT0))
    a("v_and_b32 v%d, 1, v%d" % (vT1, vL))
    a("v_lshl_add_u32 v%d, v%d, 4, v%d" % (vT0, vT1, vT0))
    a("s_lshl_b32 s%d, s%d, 5" % (sT0, sT0))
    a("s_add_u32 s%d, s%d, %d" % (sT0, sT0, L_WQ))
    a("s_mov_b32 s%d, 0" % sT1)
    for i in range(3):
        a("s_mov_b32 m0, s%d" % sT0)
        a("buffer_load_dwordx4 v%d, %s, s%d offen %slds" % (vT0, sr(sA, 4), sT1, "nt " if OPT["wqnt"] else ""))
        if i < 2:
            a("s_add_u32 s%d, s%d, 1024" % (sT0, sT0))
            a("s_add_u32 s%d, s%d, %d" % (sT1, sT1, 32 * 8192))
    a("s_branch L_crit_done")
    a.label("L_crit_hi2")
    a("s_cmp_eq_u32 s%d, 15" % sW)
    a("s_cbranch_scc1 L_crit_w15")
    a("v_mov_b32 v%d, 32" % 20)
    a("ds_write_b32 v%d, v%d offset:%d" % (vZ, 20, L_CNT))
    if OPT["noclr"]:
        a("s_branch L_crit_done")
    a("s_cmp_eq_u32 s2, 255")
    a("s_cbranch_scc1 L_crit_zero")
    a("s_cmp_ge_u32 s2, 144")
    a("s_cbranch_scc1 L_crit_done")
    for j in range(4):
        a("v_mov_b32 v%d, -1" % (16 + j))
    a("s_lshl_b32 s%d, s2, 10" % sT1)
    a("s_add_u32 s%d, s%d, 0x%x" % (sT1, sT1, WS_CLR + 18 * 1024))
    a("buffer_store_dwordx4 %s, v%d, %s, s%d offen sc1" % (vr(16, 4), vVO, sr(sWS, 4), sT1))
    a("s_add_u32 s%d, s%d, 0x%x" % (sT1, sT1, 144 * 1024))
    a("s_cmp_lt_u32 s2, 72")
    a("s_cselect_b32 s%d, s%d, 0x%x" % (sT1, sT1, WS_SIZE))
    a("buffer_store_dwordx4 %s, v%d, %s, s%d offen sc1" % (vr(16, 4), vVO, sr(sWS, 4), sT1))
    a("s_branch L_crit_done")
    a.label("L_crit_zero")
    for j in range(4):
        a("v_mov_b32 v%d, 0" % (16 + j))
    a("s_mov_b32 s%d, 0x%x" % (sT1, WS_ACC1))
    for i in range(18):
        a("buffer_store_dwordx4 %s, v%d, %s, s%d offen sc1" % (vr(16, 4), vVO, sr(sWS, 4), sT1))
        if i < 17:
            a("s_add_u32 s%d, s%d, 1024" % (sT1, sT1))
    a("s_branch L_crit_done")
    a.label("L_crit_w15")
    a.label("L_crit_done")
    a("s_barrier")
    a("s_cmp_eq_u32 s%d, 15" % sW)
    a("s_cbranch_scc1 L_w15_pre")

    def weights_dma():
        a("s_cmp_ge_u32 s2, 216")
        a("s_cbranch_scc1 L_wdma_done")
        a("s_cmp_ge_u32 s2, 144")
        a("s_cbranch_scc1 L_wdma_D")
        a("s_cmp_ge_u32 s%d, 12" % sW)
        a("s_cbranch_scc1 L_wdma_O")
        a("s_and_b32 s%d, s2, 7" % sT0)
        a("s_mul_i32 s%d, s%d, 18" % (sT0, sT0))
        a("s_lshr_b32 s%d, s2, 3" % sT1)
        a("s_add_u32 s%d, s%d, s%d" % (sT0, sT0, sT1))
        a("s_lshl_b32 s%d, s%d, 6" % (sT2, sT0))
        a("s_cmp_ge_u32 s%d, 6" % sW)
        a("s_cselect_b32 s%d, s%d, s%d" % (sT0, P_WU, P_WG))
        a("s_cselect_b32 s%d, s%d, s%d" % (sT1, P_WU + 1, P_WG + 1))
        a("s_cselect_b32 s%d, 6, 0" % sT3)
        a("s_add_u32 s%d, s%d, s%d" % (sB_, sT0, sT2))
        a("s_addc_u32 s%d, s%d, 0" % (sB_ + 1, sT1))
        a("s_sub_u32 s%d, 0x%x, s%d" % (sB_ + 2, 576 * 9216, sT2))
        a("s_mov_b32 s%d, 0x00020000" % (sB_ + 3))
        a("s_sub_u32 s%d, s%d, s%d" % (sT0, sW, sT3))
        a("s_mul_i32 s%d, s%d, 96" % (sT0, sT0))
        a("v_lshrrev_b32 v%d, 2, v%d" % (vT0, vL))
        a("v_add_u32 v%d, s%d, v%d" % (vT0, sT0, vT0))
        a("v_mul_u32_u24 v%d, 9216, v%d" % (vT0, vT0))
        a("v_and_b32 v%d, 3, v%d" % (vT1, vL))
        a("v_lshl_add_u32 v%d, v%d, 4, v%d" % (vT0, vT1, vT0))
        a("s_mul_i32 s%d, s%d, 6144" % (sT0, sW))
        a("s_add_u32 s%d, s%d, %d" % (sT0, sT0, L_WG))
        a("s_mov_b32 s%d, 0" % sT1)
        for i in range(6):
            a("s_mov_b32 m0, s%d" % sT0)
            a("buffer_load_dwordx4 v%d, %s, s%d offen nt lds" % (vT0, sr(sB_, 4), sT1))
            if i < 5:
                a("s_add_u32 s%d, s%d, 1024" % (sT0, sT0))
                a("s_add_u32 s%d, s%d, %d" % (sT1, sT1, 16 * 9216))
        a("s_branch L_wdma_done")
        a.label("L_wdma_O")
        a("s_and_b32 s%d, s2, 7" % sT0)
        a("s_lshr_b32 s%d, s2, 3" % sT1)
        a("s_lshl_b32 s%d, s%d, 1" % (sT0, sT0))
        a("s_cmp_ge_u32 s%d, 9" % sT1)
        a("s_cselect_b32 s%d, 9, 0" % sT2)
        a("s_cselect_b32 s%d, 1, 0" % sT3)
        a("s_sub_u32 s%d, s%d, s%d" % (sT1, sT1, sT2))
        a("s_add_u32 s%d, s%d, s%d" % (sT0, sT0, sT3))
        a("s_mul_i32 s%d, s%d, %d" % (sT0, sT0, 256 * 1152))
        a("s_lshl_b32 s%d, s%d, 7" % (sT1, sT1))
        a("s_add_u32 s%d, s%d, s%d" % (sT0, sT0, sT1))
        a("s_add_u32 s%d, s%d, s%d" % (sB_, P_WO, sT0))
        a("s_addc_u32 s%d, s%d, 0" % (sB_ + 1, P_WO + 1))
        a("s_mov_b32 s%d, %d" % (sB_ + 2, 255 * 1152 + 128))
        a("s_mov_b32 s%d, 0x00020000" % (sB_ + 3))
        a("s_sub_u32 s%d, s%d, 12" % (sT0, sW))
        a("s_mul_i32 s%d, s%d, 88" % (sT0, sT0))
        a("v_lshrrev_b32 v%d, 3, v%d" % (vT0, vL))
        a("v_add_u32 v%d, s%d, v%d" % (vT0, sT0, vT0))
        a("v_mul_u32_u24 v%d, 1152, v%d" % (vT0, vT0))
        a("v_and_b32 v%d, 7, v%d" % (vT1, vL))
        a("v_lshl_add_u32 v%d, v%d, 4, v%d" % (vT0, vT1, vT0))
        a("s_lshl_b32 s%d, s%d, 7" % (sT0, sT0))
        a("s_add_u32 s%d, s%d, %d" % (sT0, sT0, L_WO))
        a("s_mov_b32 s%d, 0" % sT1)
        for i in range(11):
            if i == 10:
                a("s_cmp_eq_u32 s%d, 14" % sW)
                a("s_cbranch_scc1 L_wdma_done")
            a("s_mov_b32 m0, s%d" % sT0)
            a("buffer_load_dwordx4 v%d, %s, s%d offen nt lds" % (vT0, sr(sB_, 4), sT1))
            if i < 10:
                a("s_add_u32 s%d, s%d, 1024" % (sT0, sT0))
                a("s_add_u32 s%d, s%d, %d" % (sT1, sT1, 8 * 1152))
        a("s_branch L_wdma_done")
        a.label("L_wdma_D")
        a("s_cmp_ge_u32 s%d, 12" % sW)
        a("s_cbranch_scc1 L_wdma_done")
        a("s_sub_u32 s%d, s2, 144" % sT0)
        a("s_and_b32 s%d, s%d, 7" % (sT1, sT0))
        a("s_lshr_b32 s%d, s%d, 3" % (sT0, sT0))
        a("s_mul_i32 s%d, s%d, %d" % (sT1, sT1, 576 * 1152))
        a("s_lshl_b32 s%d, s%d, 7" % (sT0, sT0))
        a("s_add_u32 s%d, s%d, s%d" % (sT0, sT0, sT1))
        a("s_add_u32 s%d, s%d, s%d" % (sB_, P_WD, sT0))
        a("s_addc_u32 s%d, s%d, 0" % (sB_ + 1, P_WD + 1))
        a("s_mov_b32 s%d, %d" % (sB_ + 2, 575 * 1152 + 128))
        a("s_mov_b32 s%d, 0x00020000" % (sB_ + 3))
        a("s_mul_i32 s%d, s%d, 48" % (sT0, sW))
        a("v_lshrrev_b32 v%d, 3, v%d" % (vT0, vL))
        a("v_add_u32 v%d, s%d, v%d" % (vT0, sT0, vT0))
        a("v_mul_u32_u24 v%d, 1152, v%d" % (vT0, vT0))
        a("v_and_b32 v%d, 7, v%d" % (vT1, vL))
        a("v_lshl_add_u32 v%d, v%d, 4, v%d" % (vT0, vT1, vT0))
        a("s_lshl_b32 s%d, s%d, 7" % (sT0, sT0))
        a("s_add_u32 s%d, s%d, %d" % (sT0, sT0, L_W))
        a("s_mov_b32 s%d, 0" % sT1)
        for i in range(6):
            a("s_mov_b32 m0, s%d" % sT0)
            a("buffer_load_dwordx4 v%d, %s, s%d offen nt lds" % (vT0, sr(sB_, 4), sT1))
            if i < 5:
                a("s_add_u32 s%d, s%d, 1024" % (sT0, sT0))
                a("s_add_u32 s%d, s%d, %d" % (sT1, sT1, 8 * 1152))
        a.label("L_wdma_done")

    def ring_load(i):
        s_, r = i >> 3, i & 7
        if r == 0:
            a("s_lshl_b32 s%d, s%d, 12" % (sOFF, (sCUR0, sCUR1)[s_]))
        elif r == 4:
            pass
        if r < 4:
            a("buffer_load_dwordx4 %s, v%d, %s, s%d offen offset:%d nt" % (vr(vRING + 32 * s_ + 4 * r, 4), vKO, sr(sK, 4), sOFF, r * 1024))
        else:
            a("buffer_load_dwordx4 %s, v%d, %s, s%d offen offset:%d nt" % (vr(vRING + 32 * s_ + 4 * r, 4), vVO, sr(sV, 4), sOFF, (r - 4) * 1024))

    def ring_fill(lo, hi):
        for i in range(lo, hi):
            if i == lo and (i & 7) != 0:
                a("s_lshl_b32 s%d, s%d, 12" % (sOFF, (sCUR0, sCUR1)[i >> 3]))
            ring_load(i)

    NPRE = OPT["npre"]
    ring_fill(0, NPRE)
    a.vmq = []
    a("s_cmp_ge_u32 s%d, 8" % sW)
    a("s_cbranch_scc1 L_q_hi")
    a("s_waitcnt vmcnt(%d)" % NPRE)
    a.label("L_q_ln")
    for e in range(9):
        a("v_lshlrev_b32 v%d, 16, v%d" % (xs[e], xs[e]))
    layernorm9(a, xs, 26)
    a("s_mul_i32 s%d, s%d, %d" % (sT0, sW, ACT_PITCH))
    a("v_lshlrev_b32 v%d, 1, v%d" % (vT0, vL))
    a("v_add_u32 v%d, s%d, v%d" % (vT0, sT0, vT0))
    for e in range(9):
        a("v_cvt_pk_bf16_f32 v%d, v%d, v%d" % (xs[e], xs[e], xs[e]))
        a("ds_write_b16 v%d, v%d offset:%d" % (vT0, xs[e], L_ACT + e * 128))
    a("s_branch L_q_b1")
    a.label("L_q_hi")
    a("s_waitcnt vmcnt(%d)" % NPRE)
    a.label("L_w15_pre")
    a.label("L_q_b1")
    if OPT["qdbg"]:
        stamp(a, 1)
    a.wait_lg_all()
    a("s_barrier")
    a("s_add_u32 s%d, s%d, 1" % (sEPO, sEPO))
    a("s_mul_i32 s%d, s%d, 0x9E3779B1" % (sTAG, sEPO))
    if OPT["qdbg"]:
        stamp(a, 5)
    a("s_cmp_ge_u32 s%d, 9" % sW)
    a("s_cbranch_scc1 L_q_b2")
    a("v_and_b32 v%d, 7, v%d" % (vT0, vL))
    a("v_mul_u32_u24 v%d, %d, v%d" % (vT0, ACT_PITCH, vT0))
    a("v_lshrrev_b32 v%d, 4, v%d" % (vT1, vL))
    a("v_lshl_add_u32 v%d, v%d, 4, v%d" % (vT0, vT1, vT0))
    a("s_lshl_b32 s%d, s%d, 7" % (sT0, sW))
    a("v_add_u32 v%d, s%d, v%d" % (vT0, sT0, vT0))
    a("v_bfe_u32 v%d, v%d, 2, 2" % (vT2, vL))
    a("v_lshl_add_u32 v%d, v%d, 3, v%d" % (vT2, vT1, vT2))
    a("v_lshlrev_b32 v%d, 5, v%d" % (vT2, vT2))
    a("v_and_b32 v%d, 3, v%d" % (vT3, vL))
    a("v_lshl_add_u32 v%d, v%d, 3, v%d" % (vT2, vT3, vT2))
    a("s_lshl_b32 s%d, s%d, 11" % (sT0, sW))
    a("v_add_u32 v%d, s%d, v%d" % (vT2, sT0, vT2))
    A0, B0, C = 16, 24, 32
    tg = []
    for s_ in range(2):
        a("ds_read_b128 %s, v%d offset:%d" % (vr(A0 + 4 * s_, 4), vT0, L_ACT + s_ * 64))
        a("ds_read_b64_tr_b16 %s, v%d offset:%d" % (vr(B0 + 4 * s_, 2), vT2, L_WQ + s_ * 1024))
        tg.append(a("ds_read_b64_tr_b16 %s, v%d offset:%d" % (vr(B0 + 4 * s_ + 2, 2), vT2, L_WQ + s_ * 1024 + 128)))
    for s_ in range(2):
        a.wait_lg(tg[s_])
        a("v_mfma_f32_16x16x32_bf16 %s, %s, %s, %s" % (vr(C, 4), vr(A0 + 4 * s_, 4), vr(B0 + 4 * s_, 4), "0" if s_ == 0 else vr(C, 4)))
    a("v_lshlrev_b32 v%d, 8, v%d" % (vT0, vT1))
    a("v_and_b32 v%d, 15, v%d" % (vT2, vL))
    a("v_lshl_add_u32 v%d, v%d, 2, v%d" % (vT0, vT2, vT0))
    a("s_lshl_b32 s%d, s%d, 9" % (sT0, sW))
    a("v_add_u32 v%d, s%d, v%d" % (vT0, sT0, vT0))
    set_exec(a, 0xffffffff)
    for j in range(4):
        a("ds_write_b32 v%d, v%d offset:%d" % (vT0, C + j, L_RED + j * 64))
    a("s_mov_b64 exec, -1")
    a.wait_lg_all()
    a.label("L_q_b2")
    a("s_barrier")
    if OPT["qdbg"]:
        stamp(a, 6)
    a("s_cmp_lg_u32 s%d, 15" % sW)
    a("s_cbranch_scc1 L_q_gather")
    a("v_lshlrev_b32 v%d, 3, v%d" % (vT0, vL))
    rr = 16
    tg = [a("ds_read_b64 %s, v%d offset:%d" % (vr(rr + 2 * w, 2), vT0, L_RED + w * 512)) for w in range(9)]
    a("v_lshrrev_b32 v%d, 3, v%d" % (vT1, vL))
    a("v_lshlrev_b32 v%d, 14, v%d" % (vT1, vT1))
    a("v_and_b32 v%d, 7, v%d" % (vT2, vL))
    a("v_lshl_add_u32 v%d, v%d, 3, v%d" % (vT1, vT2, vT1))
    a("s_lshl_b32 s%d, s%d, 6" % (sT0, sLID))
    for w in range(1, 9):
        a.wait_lg(tg[w])
        a("v_add_f32 v%d, v%d, v%d" % (rr, rr, rr + 2 * w))
        a("v_add_f32 v%d, v%d, v%d" % (rr + 1, rr + 1, rr + 2 * w + 1))
    a("v_cvt_pk_bf16_f32 v%d, v%d, v%d" % (rr, rr, rr + 1))
    a("v_mov_b32 v%d, s%d" % (rr + 1, sTAG))
    a("buffer_store_dwordx2 %s, v%d, %s, s%d offen sc1" % (vr(rr, 2), vT1, sr(sWS, 4), sT0))
    stamp(a, 2)
    a("s_barrier")
    ring_fill(0, NPRE)
    a("s_branch L_q_gather2")
    a.label("L_q_gather")
    a("s_barrier")
    weights_dma()
    a.label("L_q_gather2")
    ring_fill(NPRE, 16)
    a.vmq = []
    a("s_lshl_b32 s%d, s%d, 4" % (sT0, sHKV))
    a("s_add_u32 s%d, s%d, s%d" % (sT0, sT0, sW))
    a("s_lshl_b32 s%d, s%d, 6" % (sT0, sT0))
    a("s_lshl_b32 s%d, s%d, 14" % (sT2, sBB))
    a("s_add_u32 s%d, s%d, s%d" % (sT0, sT0, sT2))
    a("s_add_u32 s%d, s%d, s%d" % (sA, P_WS, sT0))
    a("s_addc_u32 s%d, s%d, 0" % (sA + 1, P_WS + 1))
    a("s_mov_b32 s%d, 0" % sSPIN)
    a.label("L_q_poll")
    a("s_load_dwordx16 s[%d:%d], s[%d:%d], 0 glc" % (sQD, sQD + 15, sA, sA + 1))
    a("s_waitcnt lgkmcnt(0)")
    a("s_add_u32 s%d, s%d, 1" % (sSPIN, sSPIN))
    a("s_xor_b32 s%d, s%d, s%d" % (sT0, sQD + 1, sTAG))
    for j in range(1, 8):
        a("s_xor_b32 s%d, s%d, s%d" % (sT1, sQD + 2 * j + 1, sTAG))
        a("s_or_b32 s%d, s%d, s%d" % (sT0, sT0, sT1))
    a("s_cmp_eq_u32 s%d, 0" % sT0)
    a("s_cbranch_scc1 L_q_seen")
    a("s_sleep 12")
    a("s_cmp_lt_u32 s%d, %d" % (sSPIN, SPIN_MAX))
    a("s_cbranch_scc1 L_q_poll")
    a.label("L_q_seen")
    a("s_lshl_b32 s%d, s%d, 5" % (sT0, sW))
    a("v_mov_b32 v%d, s%d" % (vT0, sT0))
    for j in range(8):
        a("v_mov_b32 v%d, s%d" % (16 + j, sQD + 2 * j))
    a("s_mov_b64 exec, 1")
    a("ds_write_b128 v%d, %s offset:%d" % (vT0, vr(16, 4), L_QS))
    a("ds_write_b128 v%d, %s offset:%d" % (vT0, vr(20, 4), L_QS + 16))
    a("s_mov_b64 exec, -1")
    a("v_lshrrev_b32 v%d, 4, v%d" % (vT0, vL))
    a("v_and_b32 v%d, 3, v%d" % (vT1, vL))
    a("v_lshl_add_u32 v%d, v%d, 2, v%d" % (vT0, vT0, vT1))
    a("v_bfe_u32 v%d, v%d, 3, 1" % (vT1, vL))
    a("v_lshl_add_u32 v%d, v%d, 4, v%d" % (vT0, vT1, vT0))
    a("v_lshlrev_b32 v%d, 4, v%d" % (vT0, vT0))
    a.wait_lg_all()
    a("s_barrier")
    a("ds_read_b128 %s, v%d offset:%d" % (vr(vQ, 4), vT0, L_QS))
    a("s_mov_b64 exec, 1")
    a("ds_add_rtn_u32 v%d, v%d, v%d offset:%d" % (vIDX, vZ, vONE, L_CNT))
    a("s_mov_b64 exec, -1")
    a("v_mov_b32 v%d, 0xff800000" % vMX)
    a("v_mov_b32 v%d, 0" % vLS)
    for j in range(4):
        a("v_mov_b32 v%d, 0" % (vACC + j))
    stamp(a, 3)

    def body(s_, cur):
        kb = vRING + 32 * s_
        vb = kb + 16
        a.wait_lg_all()
        a("v_readfirstlane_b32 s%d, v%d" % (sNEW, vIDX))
        a("s_mov_b64 exec, 1")
        a("ds_add_rtn_u32 v%d, v%d, v%d offset:%d" % (vIDX, vZ, vONE, L_CNT))
        a("s_mov_b64 exec, -1")
        a("s_lshl_b32 s%d, s%d, 12" % (sOFF, sNEW))
        for j in range(4):
            a("s_waitcnt vmcnt(15)")
            a("v_mfma_f32_16x16x32_bf16 %s, %s, %s, 0" % (vr(vC + 4 * j, 4), vr(kb + 4 * j, 4), vr(vQ, 4)))
            a("buffer_load_dwordx4 %s, v%d, %s, s%d offen offset:%d nt" % (vr(kb + 4 * j, 4), vKO, sr(sK, 4), sOFF, j * 1024))
        for j in range(4):
            c = vC + 4 * j
            t = vS + j
            a("v_mov_b32_dpp v%d, v%d quad_perm:[0,0,0,0]%s" % (t, c, DPP))
            for i in range(1, 4):
                a("v_add_f32_dpp v%d, v%d, v%d quad_perm:[%d,%d,%d,%d]%s" % (t, c + i, t, i, i, i, i, DPP))
        for h in range(2):
            x, y, p = vS + 2 * h, vS + 2 * h + 1, vS + 4 + h
            a("v_cvt_pk_bf16_f32 v%d, v%d, v%d" % (p, x, y))
            a("v_lshlrev_b32 v%d, 16, v%d" % (x, p))
            a("v_and_b32 v%d, s%d, v%d" % (y, sHI, p))
            a("v_mul_f32 v%d, 0x%08x, v%d" % (x, SCALE, x))
            a("v_mul_f32 v%d, 0x%08x, v%d" % (y, SCALE, y))
            a("v_cvt_pk_bf16_f32 v%d, v%d, v%d" % (p, x, y))
            a("v_lshlrev_b32 v%d, 16, v%d" % (x, p))
            a("v_and_b32 v%d, s%d, v%d" % (y, sHI, p))
        mu, t = vS + 4, vS + 5
        a("v_max3_f32 v%d, v%d, v%d, v%d" % (mu, vS, vS + 1, vS + 2))
        a("v_max3_f32 v%d, v%d, v%d, v%d" % (mu, mu, vS + 3, vMX))
        allreduce(a, mu, t, "max", lo=False, hi=True)
        a("v_sub_f32 v%d, v%d, v%d" % (t, vMX, mu))
        a("v_mul_f32 v%d, 0x%08x, v%d" % (t, LOG2E, t))
        a("v_exp_f32 v%d, v%d" % (t, t))
        a("v_mov_b32 v%d, v%d" % (vMX, mu))
        a("v_mul_f32 v%d, 0x%08x, v%d" % (vNM, LOG2E ^ 0x80000000, mu))
        a("v_mul_f32 v%d, v%d, v%d" % (vLS, vLS, t))
        for j in range(4):
            a("v_mul_f32 v%d, v%d, v%d" % (vACC + j, vACC + j, t))
        for j in range(4):
            e = vS + j
            bb = vB + 4 * (j & 1)
            a("v_fma_f32 v%d, v%d, s%d, v%d" % (e, e, sL2E, vNM))
            a("v_exp_f32 v%d, v%d" % (e, e))
            a("v_add_f32 v%d, v%d, v%d" % (vLS, vLS, e))
            a("v_cvt_pk_bf16_f32 v%d, v%d, v%d" % (e, e, e))
            for i in range(4):
                a("v_and_b32 v%d, v%d, v%d" % (bb + i, e, vM + i))
            a("s_waitcnt vmcnt(15)")
            a("v_mfma_f32_16x16x32_bf16 %s, %s, %s, %s" % (vr(vACC, 4), vr(vb + 4 * j, 4), vr(bb, 4), vr(vACC, 4)))
            a("buffer_load_dwordx4 %s, v%d, %s, s%d offen offset:%d nt" % (vr(vb + 4 * j, 4), vVO, sr(sV, 4), sOFF, j * 1024))
        a("s_mov_b32 s%d, s%d" % (cur, sNEW))
        a.vmq = []

    a.label("L_loop")
    body(0, sCUR0)
    a("s_cmp_ge_u32 s%d, s%d" % (sCUR1, sNU))
    a("s_cbranch_scc1 L_loop_exit")
    body(1, sCUR1)
    a("s_cmp_lt_u32 s%d, s%d" % (sCUR0, sNU))
    a("s_cbranch_scc1 L_loop")
    a.label("L_loop_exit")
    allreduce(a, vLS, vT1, "add", lo=False, hi=True)
    a("s_lshl_b32 s%d, s%d, 10" % (sT0, sW))
    a("v_add_u32 v%d, s%d, v%d" % (vT0, sT0, vVO))
    a("ds_write_b128 v%d, %s offset:%d" % (vT0, vr(vACC, 4), L_RED))
    a("v_bfe_u32 v%d, v%d, 3, 1" % (vT1, vL))
    a("v_lshlrev_b32 v%d, 3, v%d" % (vT1, vT1))
    a("s_lshl_b32 s%d, s%d, 4" % (sT0, sW))
    a("v_add_u32 v%d, s%d, v%d" % (vT2, sT0, vT1))
    a("ds_write_b64 v%d, %s offset:%d" % (vT2, vr(vMX, 2), L_ML))
    a.wait_all()
    a("s_barrier")
    stamp(a, 4)
    a("s_cmp_lg_u32 s%d, 0" % sW)
    a("s_cbranch_scc1 L_tail")
    ml, ov = 56, 16 + 0
    M, Ls, t = 8, 9, 10
    for w in range(16):
        a("ds_read_b64 %s, v%d offset:%d" % (vr(ml + 2 * w, 2), vT1, L_ML + w * 16))
    ovr = [16 + 4 * i for i in range(8)] + [88 + 4 * i for i in range(8)]
    otg = [a("ds_read_b128 %s, v%d offset:%d" % (vr(ovr[w], 4), vVO, L_RED + w * 1024)) for w in range(16)]
    a("s_waitcnt lgkmcnt(15)")
    a.lgq = a.lgq[-15:]
    a("v_max_f32 v%d, v%d, v%d" % (M, ml, ml + 2))
    for w in range(2, 16, 2):
        a("v_max3_f32 v%d, v%d, v%d, v%d" % (M, M, ml + 2 * w, ml + 2 * w + 2))
    O = 12
    for w in range(16):
        a("v_sub_f32 v%d, v%d, v%d" % (t, ml + 2 * w, M))
        a("v_mul_f32 v%d, 0x%08x, v%d" % (t, LOG2E, t))
        a("v_exp_f32 v%d, v%d" % (t, t))
        a.wait_lg(otg[w])
        if w == 0:
            a("v_mul_f32 v%d, v%d, v%d" % (Ls, t, ml + 1))
            for j in range(4):
                a("v_mul_f32 v%d, v%d, v%d" % (O + j, t, ovr[w] + j))
        else:
            a("v_fmac_f32 v%d, v%d, v%d" % (Ls, t, ml + 2 * w + 1))
            for j in range(4):
                a("v_fmac_f32 v%d, v%d, v%d" % (O + j, t, ovr[w] + j))
    for j in range(4):
        a("v_mov_b32 v%d, v%d" % (16 + 2 * j, O + j))
        a("v_mov_b32 v%d, s%d" % (17 + 2 * j, sTAG))
    a("v_mov_b32 v24, v%d" % M)
    a("v_mov_b32 v25, s%d" % sTAG)
    a("v_mov_b32 v26, v%d" % Ls)
    a("v_mov_b32 v27, s%d" % sTAG)
    a("v_lshlrev_b32 v%d, 5, v%d" % (vT0, vL))
    a("s_lshl_b32 s%d, s%d, 11" % (sT0, sLID))
    a("s_add_u32 s%d, s%d, 0x%x" % (sT0, sT0, WS_PART))
    a("buffer_store_dwordx4 %s, v%d, %s, s%d offen sc1" % (vr(16, 4), vT0, sr(sWS, 4), sT0))
    a("buffer_store_dwordx4 %s, v%d, %s, s%d offen offset:16 sc1" % (vr(20, 4), vT0, sr(sWS, 4), sT0))
    a("v_lshlrev_b32 v%d, 1, v%d" % (vT1, vT1))
    a("s_lshl_b32 s%d, s%d, 5" % (sT0, sLID))
    a("s_add_u32 s%d, s%d, 0x%x" % (sT0, sT0, WS_STAT))
    a("s_mov_b64 exec, 0x101")
    a("buffer_store_dwordx4 %s, v%d, %s, s%d offen sc1" % (vr(24, 4), vT1, sr(sWS, 4), sT0))
    a("s_mov_b64 exec, -1")
    a("s_cmp_lg_u32 s2, 255")
    a("s_cbranch_scc1 L_noz")
    for j in range(4):
        a("v_mov_b32 v%d, s%d" % (28 + j, sTAG))
    a("s_mov_b32 s%d, 0x%x" % (sT0, WS_Z))
    a("s_mov_b64 exec, 1")
    a("buffer_store_dwordx4 %s, v%d, %s, s%d offen sc1" % (vr(28, 4), vZ, sr(sWS, 4), sT0))
    a("s_mov_b64 exec, -1")
    a.label("L_noz")

    def poll4(lbl, addr, nlanes, all4):
        a("s_mov_b32 s%d, 0" % sSPIN)
        set_exec(a, (1 << nlanes) - 1)
        a.label(lbl)
        a("buffer_load_dwordx4 %s, v%d, %s, 0 offen sc1" % (vr(16, 4), addr, sr(sWS, 4)))
        a("s_add_u32 s%d, s%d, 1" % (sSPIN, sSPIN))
        a.wait_vm_all()
        a("v_xor_b32 v17, s%d, v17" % sTAG)
        a("v_xor_b32 v19, s%d, v19" % sTAG)
        if all4:
            a("v_xor_b32 v16, s%d, v16" % sTAG)
            a("v_xor_b32 v18, s%d, v18" % sTAG)
            a("v_or3_b32 v17, v17, v16, v18")
        a("v_or_b32 v17, v17, v19")
        a("v_cmp_ne_u32 vcc, 0, v17")
        a("s_cbranch_vccz %s_ok" % lbl)
        a("s_sleep 1")
        a("s_cmp_lt_u32 s%d, %d" % (sSPIN, SPIN_MAX))
        a("s_cbranch_scc1 %s" % lbl)
        a.label(lbl + "_ok")
        a("s_mov_b64 exec, -1")

    def e2_addr(reg):
        a("v_lshrrev_b32 v%d, 1, v%d" % (reg, vL))
        a("v_lshlrev_b32 v%d, 6, v%d" % (reg, reg))
        a("v_and_b32 v%d, 1, v%d" % (vT3, vL))
        a("v_lshl_add_u32 v%d, v%d, 4, v%d" % (reg, vT3, reg))
        a("v_add_u32 v%d, 0x%x, v%d" % (reg, WS_F2, reg))

    def o_role():
        a("s_and_b32 s%d, s2, 7" % sT0)
        a("s_lshr_b32 s%d, s2, 3" % sR1)
        a("s_lshl_b32 s%d, s%d, 1" % (sR0, sT0))
        a("s_cmp_ge_u32 s%d, 9" % sR1)
        a("s_cselect_b32 s%d, 9, 0" % sT2)
        a("s_cselect_b32 s%d, 1, 0" % sT3)
        a("s_sub_u32 s%d, s%d, s%d" % (sR1, sR1, sT2))
        a("s_add_u32 s%d, s%d, s%d" % (sR0, sR0, sT3))

    a("s_cmp_ge_u32 s2, 216")
    a("s_cbranch_scc1 L_fin")
    a("s_cmp_ge_u32 s2, 144")
    a("s_cbranch_scc1 L_w0_D")
    o_role()
    a("s_lshl_b32 s%d, s%d, 9" % (sT0, sR0))
    a("s_add_u32 s%d, s%d, 0x%x" % (sT0, sT0, WS_STAT))
    a("v_add_u32 v%d, s%d, v%d" % (vT2, sT0, vVO))
    a("v_mov_b32 v%d, 0x%x" % (vT3, WS_Z))
    a("v_cmp_eq_u32 vcc, 32, v%d" % vL)
    a("v_cndmask_b32 v%d, v%d, v%d, vcc" % (vT2, vT2, vT3))
    poll4("L_e1", vT2, 33, False)
    a("s_branch L_tail")
    a.label("L_w0_D")
    e2_addr(vT2)
    poll4("L_e2d", vT2, 36, True)
    a.label("L_tail")
    a("s_cmp_ge_u32 s2, 216")
    a("s_cbranch_scc1 L_fin")
    a("s_barrier")
    stamp(a, 5, True)
    a("s_cmp_ge_u32 s2, 144")
    a("s_cbranch_scc1 L_D")
    o_role()
    a("v_lshrrev_b32 v%d, 7, v0" % vT0)
    a("v_and_b32 v%d, 127, v0" % vT1)
    a("v_lshlrev_b32 v%d, 12, v%d" % (28, vT0))
    a("v_lshl_add_u32 v%d, v%d, 4, v%d" % (28, vT1, 28))
    a("s_lshl_b32 s%d, s%d, 15" % (sT0, sR0))
    a("s_add_u32 s%d, s%d, 0x%x" % (sT0, sT0, WS_PART))
    a("v_bfe_u32 v%d, v%d, 4, 1" % (vT3, vT1))
    a("v_lshlrev_b32 v%d, 6, v%d" % (29, vT0))
    a("v_lshl_add_u32 v%d, v%d, 4, v%d" % (29, vT3, 29))
    a("s_lshl_b32 s%d, s%d, 9" % (sT1, sR0))
    a("s_add_u32 s%d, s%d, 0x%x" % (sT1, sT1, WS_STAT))
    a("s_mov_b32 s%d, 0" % sSPIN)
    a.label("L_o_ld")
    a("buffer_load_dwordx4 %s, v28, %s, s%d offen sc1" % (vr(32, 4), sr(sWS, 4), sT0))
    a("buffer_load_dwordx4 %s, v28, %s, s%d offen offset:2048 sc1" % (vr(36, 4), sr(sWS, 4), sT0))
    a("buffer_load_dwordx4 %s, v29, %s, s%d offen sc1" % (vr(40, 4), sr(sWS, 4), sT1))
    a("buffer_load_dwordx4 %s, v29, %s, s%d offen offset:32 sc1" % (vr(44, 4), sr(sWS, 4), sT1))
    a("s_add_u32 s%d, s%d, 1" % (sSPIN, sSPIN))
    a.wait_vm_all()
    for j in range(8):
        a("v_xor_b32 v%d, s%d, v%d" % (33 + 2 * j, sTAG, 33 + 2 * j))
    a("v_or3_b32 v33, v33, v35, v37")
    a("v_or3_b32 v33, v33, v39, v41")
    a("v_or3_b32 v33, v33, v43, v45")
    a("v_or_b32 v33, v33, v47")
    a("v_cmp_ne_u32 vcc, 0, v33")
    a("s_cbranch_vccz L_o_ld_ok")
    a("s_cmp_lt_u32 s%d, %d" % (sSPIN, SPIN_MAX))
    a("s_cbranch_scc1 L_o_ld")
    a.label("L_o_ld_ok")
    for d_, s_ in ((8, 32), (9, 34), (10, 36), (11, 38), (12, 40), (13, 42), (14, 44), (15, 46)):
        a("v_mov_b32 v%d, v%d" % (d_, s_))
    a("v_mul_u32_u24 v%d, %d, v%d" % (vT0, O_ACT_PITCH, vT0))
    a("v_lshl_add_u32 v%d, v%d, 8, v%d" % (vT0, vT3, vT0))
    a("v_lshrrev_b32 v%d, 5, v%d" % (vT2, vT1))
    a("v_lshl_add_u32 v%d, v%d, 6, v%d" % (vT0, vT2, vT0))
    a("v_and_b32 v%d, 1, v%d" % (vT2, vT1))
    a("v_lshl_add_u32 v%d, v%d, 5, v%d" % (vT0, vT2, vT0))
    a("v_bfe_u32 v%d, v%d, 1, 3" % (vT2, vT1))
    a("v_lshl_add_u32 v%d, v%d, 1, v%d" % (vT0, vT2, vT0))
    M, e0, e1, den, n0, n1 = 16, 17, 18, 19, 20, 21
    a("v_max_f32 v%d, v12, v14" % M)
    a("v_sub_f32 v%d, v12, v%d" % (e0, M))
    a("v_sub_f32 v%d, v14, v%d" % (e1, M))
    a("v_mul_f32 v%d, 0x%08x, v%d" % (e0, LOG2E, e0))
    a("v_mul_f32 v%d, 0x%08x, v%d" % (e1, LOG2E, e1))
    a("v_exp_f32 v%d, v%d" % (e0, e0))
    a("v_exp_f32 v%d, v%d" % (e1, e1))
    a("v_mul_f32 v%d, v%d, v13" % (den, e0))
    a("v_fmac_f32 v%d, v%d, v15" % (den, e1))
    a("v_rcp_f32 v%d, v%d" % (den, den))
    a("v_mul_f32 v%d, v%d, v8" % (n0, e0))
    a("v_fmac_f32 v%d, v%d, v10" % (n0, e1))
    a("v_mul_f32 v%d, v%d, v9" % (n1, e0))
    a("v_fmac_f32 v%d, v%d, v11" % (n1, e1))
    a("v_mul_f32 v%d, v%d, v%d" % (n0, n0, den))
    a("v_mul_f32 v%d, v%d, v%d" % (n1, n1, den))
    a("v_cvt_pk_bf16_f32 v%d, v%d, v%d" % (n0, n0, n1))
    a("ds_write_b16 v%d, v%d offset:%d" % (vT0, n0, L_ACT))
    a("ds_write_b16_d16_hi v%d, v%d offset:%d" % (vT0, n0, L_ACT + 16))
    a.wait_lg_all()
    a("s_barrier")
    a("s_cmp_ge_u32 s%d, 8" % sW)
    a("s_cbranch_scc1 L_o_b7")
    a("v_and_b32 v%d, 7, v%d" % (vT0, vL))
    a("v_mul_u32_u24 v%d, %d, v%d" % (vT0, O_ACT_PITCH, vT0))
    a("v_lshrrev_b32 v%d, 4, v%d" % (vT1, vL))
    a("v_lshl_add_u32 v%d, v%d, 4, v%d" % (vT0, vT1, vT0))
    a("s_lshr_b32 s%d, s%d, 2" % (sT0, sW))
    a("s_lshl_b32 s%d, s%d, 8" % (sT1, sT0))
    a("v_add_u32 v%d, s%d, v%d" % (vT0, sT1, vT0))
    a("v_bfe_u32 v%d, v%d, 2, 2" % (vT2, vL))
    a("v_lshl_add_u32 v%d, v%d, 3, v%d" % (vT2, vT1, vT2))
    a("v_lshlrev_b32 v%d, 7, v%d" % (vT2, vT2))
    a("v_and_b32 v%d, 3, v%d" % (vT3, vL))
    a("v_lshl_add_u32 v%d, v%d, 3, v%d" % (vT2, vT3, vT2))
    a("s_lshl_b32 s%d, s%d, 14" % (sT0, sT0))
    a("s_and_b32 s%d, s%d, 3" % (sT1, sW))
    a("s_lshl_b32 s%d, s%d, 5" % (sT1, sT1))
    a("s_add_u32 s%d, s%d, s%d" % (sT0, sT0, sT1))
    a("s_add_u32 s%d, s%d, %d" % (sT0, sT0, L_WO))
    a("v_add_u32 v%d, s%d, v%d" % (vT2, sT0, vT2))
    A0, B0, C = 8, 24, 40
    tg = []
    for s_ in range(4):
        a("ds_read_b128 %s, v%d offset:%d" % (vr(A0 + 4 * s_, 4), vT0, L_ACT + s_ * 64))
        a("ds_read_b64_tr_b16 %s, v%d offset:%d" % (vr(B0 + 4 * s_, 2), vT2, s_ * 4096))
        tg.append(a("ds_read_b64_tr_b16 %s, v%d offset:%d" % (vr(B0 + 4 * s_ + 2, 2), vT2, s_ * 4096 + 512)))
    a("v_mul_u32_u24 v%d, %d, v%d" % (vT0, 4 * 2304, vT1))
    a("v_and_b32 v%d, 15, v%d" % (vT2, vL))
    a("v_lshl_add_u32 v%d, v%d, 2, v%d" % (vT0, vT2, vT0))
    a("v_add_u32 v%d, %d, v%d" % (vT3, 4608, vT0))
    a("s_lshl_b32 s%d, s%d, 8" % (sT0, sR1))
    a("s_and_b32 s%d, s%d, 3" % (sT1, sW))
    a("s_lshl_b32 s%d, s%d, 6" % (sT1, sT1))
    a("s_add_u32 s%d, s%d, s%d" % (sT0, sT0, sT1))
    a("s_add_u32 s%d, s%d, 0x%x" % (sT0, sT0, WS_ACC1))
    for s_ in range(4):
        a.wait_lg(tg[s_])
        a("v_mfma_f32_16x16x32_bf16 %s, %s, %s, %s" % (vr(C, 4), vr(A0 + 4 * s_, 4), vr(B0 + 4 * s_, 4), "0" if s_ == 0 else vr(C, 4)))
    set_exec(a, 0xffffffff)
    for j in range(4):
        a("buffer_atomic_add_f32 v%d, v%d, %s, s%d offen offset:%d sc1" % (C + j, vT0 if j < 2 else vT3, sr(sWS, 4), sT0, 2304 * (j & 1)))
    a("s_mov_b64 exec, -1")
    a.wait_vm_all()
    a.label("L_o_b7")
    a("s_barrier")
    stamp(a, 1, True)
    a("s_cmp_lg_u32 s%d, 0" % sW)
    a("s_cbranch_scc1 L_g_b8")
    a("s_lshr_b32 s%d, s2, 3" % sT0)
    a("s_lshl_b32 s%d, s%d, 6" % (sT0, sT0))
    a("s_and_b32 s%d, s2, 7" % sT1)
    a("s_lshl_b32 s%d, s%d, 2" % (sT1, sT1))
    a("s_add_u32 s%d, s%d, s%d" % (sT0, sT0, sT1))
    a("s_add_u32 s%d, s%d, 0x%x" % (sT0, sT0, WS_F2))
    a("v_mov_b32 v%d, s%d" % (vT2, sTAG))
    a("s_mov_b64 exec, 1")
    a("buffer_store_dword v%d, v%d, %s, s%d offen sc1" % (vT2, vZ, sr(sWS, 4), sT0))
    a("s_mov_b64 exec, -1")
    e2_addr(vT2)
    poll4("L_e2", vT2, 36, True)
    a("s_cmp_lg_u32 s2, 0")
    a("s_cbranch_scc1 L_g_b8")
    a("v_mov_b32 v%d, s%d" % (vT2, sEPO))
    a("s_mov_b32 s%d, 0x%x" % (sT0, WS_EPOCH))
    a("s_mov_b64 exec, 1")
    a("buffer_store_dword v%d, v%d, %s, s%d offen sc1" % (vT2, vZ, sr(sWS, 4), sT0))
    a("s_mov_b64 exec, -1")
    a.label("L_g_b8")
    a("s_barrier")
    stamp(a, 6, True)
    a("s_cmp_ge_u32 s%d, 8" % sW)
    a("s_cbranch_scc1 L_g_b9")
    a("s_mul_i32 s%d, s%d, 1152" % (sT0, sW))
    srd(a, sA, P_X, 1152, "s%d" % sT0)
    a("s_mul_i32 s%d, s%d, 2304" % (sT0, sW))
    a("s_add_u32 s%d, s%d, 0x%x" % (sT0, sT0, WS_ACC1))
    xs = list(range(8, 17))
    aa = list(range(17, 26))
    a("v_lshlrev_b32 v%d, 2, v%d" % (vT0, vL))
    for e in range(9):
        a("buffer_load_dword v%d, v%d, %s, s%d offen offset:%d sc1" % (aa[e], vT0, sr(sWS, 4), sT0, e * 256))
    a("v_lshlrev_b32 v%d, 1, v%d" % (vT0, vL))
    for e in range(9):
        a("buffer_load_ushort v%d, v%d, %s, 0 offen offset:%d" % (xs[e], vT0, sr(sA, 4), e * 128))
    a.wait_vm_all()
    for e in range(9):
        a("v_lshlrev_b32 v%d, 16, v%d" % (xs[e], xs[e]))
        bf16r(a, aa[e], aa[e])
        a("v_add_f32 v%d, v%d, v%d" % (xs[e], xs[e], aa[e]))
        bf16r(a, xs[e], xs[e])
    layernorm9(a, xs, 26)
    a("s_mul_i32 s%d, s%d, %d" % (sT0, sW, ACT_PITCH))
    a("v_add_u32 v%d, s%d, v%d" % (vT0, sT0, vT0))
    for e in range(9):
        a("v_cvt_pk_bf16_f32 v%d, v%d, v%d" % (xs[e], xs[e], xs[e]))
        a("ds_write_b16 v%d, v%d offset:%d" % (vT0, xs[e], L_ACT + e * 128))
    a.wait_lg_all()
    a.label("L_g_b9")
    a("s_barrier")
    a("s_cmp_ge_u32 s%d, 12" % sW)
    a("s_cbranch_scc1 L_g_b10")
    a("v_and_b32 v%d, 7, v%d" % (vT0, vL))
    a("v_mul_u32_u24 v%d, %d, v%d" % (vT0, ACT_PITCH, vT0))
    a("v_lshrrev_b32 v%d, 4, v%d" % (vT1, vL))
    a("v_lshl_add_u32 v%d, v%d, 4, v%d" % (vT0, vT1, vT0))
    a("s_lshr_b32 s%d, s%d, 2" % (sT0, sW))
    a("s_mul_i32 s%d, s%d, 384" % (sT1, sT0))
    a("v_add_u32 v%d, s%d, v%d" % (vT0, sT1, vT0))
    a("v_bfe_u32 v%d, v%d, 2, 2" % (vT2, vL))
    a("v_lshl_add_u32 v%d, v%d, 3, v%d" % (vT2, vT1, vT2))
    a("v_lshlrev_b32 v%d, 6, v%d" % (vT2, vT2))
    a("v_and_b32 v%d, 3, v%d" % (vT3, vL))
    a("v_lshl_add_u32 v%d, v%d, 3, v%d" % (vT2, vT3, vT2))
    a("s_mul_i32 s%d, s%d, %d" % (sT0, sT0, 192 * 64))
    a("s_and_b32 s%d, s%d, 1" % (sT1, sW))
    a("s_lshl_b32 s%d, s%d, 5" % (sT1, sT1))
    a("s_add_u32 s%d, s%d, s%d" % (sT0, sT0, sT1))
    a("s_bitcmp1_b32 s%d, 1" % sW)
    a("s_cselect_b32 s%d, %d, 0" % (sT1, 36864))
    a("s_add_u32 s%d, s%d, s%d" % (sT0, sT0, sT1))
    a("s_add_u32 s%d, s%d, %d" % (sT0, sT0, L_WG))
    a("v_add_u32 v%d, s%d, v%d" % (vT2, sT0, vT2))
    A0, B0, C = 8, 32, 56
    tg = []
    for s_ in range(6):
        a("ds_read_b128 %s, v%d offset:%d" % (vr(A0 + 4 * s_, 4), vT0, L_ACT + s_ * 64))
        a("ds_read_b64_tr_b16 %s, v%d offset:%d" % (vr(B0 + 4 * s_, 2), vT2, s_ * 2048))
        tg.append(a("ds_read_b64_tr_b16 %s, v%d offset:%d" % (vr(B0 + 4 * s_ + 2, 2), vT2, s_ * 2048 + 256)))
    a("v_lshlrev_b32 v%d, 8, v%d" % (vT0, vT1))
    a("v_and_b32 v%d, 15, v%d" % (vT2, vL))
    a("v_lshl_add_u32 v%d, v%d, 2, v%d" % (vT0, vT2, vT0))
    a("s_lshl_b32 s%d, s%d, 9" % (sT0, sW))
    a("v_add_u32 v%d, s%d, v%d" % (vT0, sT0, vT0))
    for s_ in range(6):
        a.wait_lg(tg[s_])
        a("v_mfma_f32_16x16x32_bf16 %s, %s, %s, %s" % (vr(C, 4), vr(A0 + 4 * s_, 4), vr(B0 + 4 * s_, 4), "0" if s_ == 0 else vr(C, 4)))
    set_exec(a, 0xffffffff)
    for j in range(4):
        a("ds_write_b32 v%d, v%d offset:%d" % (vT0, C + j, L_RED + j * 64))
    a("s_mov_b64 exec, -1")
    a.wait_lg_all()
    a.label("L_g_b10")
    a("s_barrier")
    a("s_cmp_ge_u32 s%d, 2" % sW)
    a("s_cbranch_scc1 L_fin")
    a("v_lshrrev_b32 v%d, 4, v0" % vT0)
    a("v_bfe_u32 v%d, v0, 3, 1" % vT1)
    a("v_lshlrev_b32 v%d, 9, v%d" % (vT1, vT1))
    a("v_lshl_add_u32 v%d, v%d, 6, v%d" % (vT1, vT0, vT1))
    a("v_and_b32 v%d, 7, v0" % vT2)
    a("v_lshl_add_u32 v%d, v%d, 3, v%d" % (vT1, vT2, vT1))
    for kp in range(3):
        a("ds_read_b64 %s, v%d offset:%d" % (vr(8 + 2 * kp, 2), vT1, L_RED + kp * 2048))
        a("ds_read_b64 %s, v%d offset:%d" % (vr(14 + 2 * kp, 2), vT1, L_RED + kp * 2048 + 1024))
    a("v_mul_u32_u24 v%d, 9216, v%d" % (vT0, vT0))
    a("v_and_b32 v%d, 15, v0" % vT2)
    a("v_lshl_add_u32 v%d, v%d, 2, v%d" % (vT0, vT2, vT0))
    a("s_and_b32 s%d, s2, 7" % sT0)
    a("s_mul_i32 s%d, s%d, 18" % (sT0, sT0))
    a("s_lshr_b32 s%d, s2, 3" % sT1)
    a("s_add_u32 s%d, s%d, s%d" % (sT0, sT0, sT1))
    a("s_lshl_b32 s%d, s%d, 6" % (sT0, sT0))
    a("s_add_u32 s%d, s%d, 0x%x" % (sT0, sT0, WS_T))
    a.wait_lg_all()
    for c in range(2):
        G, U = 8 + c, 14 + c
        a("v_add_f32 v%d, v%d, v%d" % (G, G, G + 2))
        a("v_add_f32 v%d, v%d, v%d" % (G, G, G + 4))
        a("v_add_f32 v%d, v%d, v%d" % (U, U, U + 2))
        a("v_add_f32 v%d, v%d, v%d" % (U, U, U + 4))
        bf16r(a, G, G)
        bf16r(a, U, U)
        gelu(a, G, 20, 21)
        bf16r(a, G, G)
        a("v_mul_f32 v%d, v%d, v%d" % (G, G, U))
    a("v_cvt_pk_bf16_f32 v8, v8, v9")
    a("buffer_store_dword v8, v%d, %s, s%d offen sc1" % (vT0, sr(sWS, 4), sT0))
    a("s_branch L_fin")

    a.label("L_D")
    a("s_sub_u32 s%d, s2, 144" % sT0)
    a("s_and_b32 s%d, s%d, 7" % (sR0, sT0))
    a("s_lshr_b32 s%d, s%d, 3" % (sR1, sT0))
    a("s_cmp_ge_u32 s%d, 9" % sW)
    a("s_cbranch_scc1 L_d_b6")
    a("v_and_b32 v%d, 7, v%d" % (vT0, vL))
    a("v_mul_u32_u24 v%d, 9216, v%d" % (vT0, vT0))
    a("v_lshrrev_b32 v%d, 4, v%d" % (vT1, vL))
    a("v_lshl_add_u32 v%d, v%d, 4, v%d" % (vT0, vT1, vT0))
    a("s_mul_i32 s%d, s%d, 1152" % (sT0, sR0))
    a("s_lshl_b32 s%d, s%d, 7" % (sT1, sW))
    a("s_add_u32 s%d, s%d, s%d" % (sT0, sT0, sT1))
    a("s_add_u32 s%d, s%d, 0x%x" % (sT0, sT0, WS_T))
    a("v_bfe_u32 v%d, v%d, 2, 2" % (vT2, vL))
    a("v_lshl_add_u32 v%d, v%d, 3, v%d" % (vT2, vT1, vT2))
    a("v_lshlrev_b32 v%d, 7, v%d" % (vT2, vT2))
    a("v_and_b32 v%d, 3, v%d" % (vT3, vL))
    a("v_lshl_add_u32 v%d, v%d, 3, v%d" % (vT2, vT3, vT2))
    a("s_lshl_b32 s%d, s%d, 13" % (sT1, sW))
    a("s_add_u32 s%d, s%d, %d" % (sT1, sT1, L_W))
    a("v_add_u32 v%d, s%d, v%d" % (vT2, sT1, vT2))
    A0, B0, C = 8, 16, 48
    for s_ in range(2):
        for ct in range(4):
            r = B0 + 4 * (s_ * 4 + ct)
            a("ds_read_b64_tr_b16 %s, v%d offset:%d" % (vr(r, 2), vT2, s_ * 4096 + ct * 32))
            a("ds_read_b64_tr_b16 %s, v%d offset:%d" % (vr(r + 2, 2), vT2, s_ * 4096 + ct * 32 + 512))
    a("s_mov_b32 s%d, 0" % sSPIN)
    a.label("L_d_poll")
    a("buffer_load_dwordx4 %s, v%d, %s, s%d offen sc1" % (vr(A0, 4), vT0, sr(sWS, 4), sT0))
    a("buffer_load_dwordx4 %s, v%d, %s, s%d offen offset:64 sc1" % (vr(A0 + 4, 4), vT0, sr(sWS, 4), sT0))
    a("s_add_u32 s%d, s%d, 1" % (sSPIN, sSPIN))
    a.wait_vm_all()
    a("v_max_u32 v64, v8, v9")
    a("v_max3_u32 v64, v64, v10, v11")
    a("v_max3_u32 v64, v64, v12, v13")
    a("v_max3_u32 v64, v64, v14, v15")
    a("v_cmp_eq_u32 vcc, -1, v64")
    a("s_cbranch_vccz L_d_ok")
    a("s_cmp_lt_u32 s%d, %d" % (sSPIN, SPIN_MAX))
    a("s_cbranch_scc1 L_d_poll")
    a.label("L_d_ok")
    stamp(a, 6, True)
    a.wait_lg_all()
    for s_ in range(2):
        for ct in range(4):
            a("v_mfma_f32_16x16x32_bf16 %s, %s, %s, %s" % (vr(C + 4 * ct, 4), vr(A0 + 4 * s_, 4), vr(B0 + 4 * (s_ * 4 + ct), 4), "0" if s_ == 0 else vr(C + 4 * ct, 4)))
    a("v_lshlrev_b32 v%d, 10, v%d" % (vT0, vT1))
    a("v_and_b32 v%d, 15, v%d" % (vT2, vL))
    a("v_lshl_add_u32 v%d, v%d, 2, v%d" % (vT0, vT2, vT0))
    a("s_lshl_b32 s%d, s%d, 11" % (sT0, sW))
    a("v_add_u32 v%d, s%d, v%d" % (vT0, sT0, vT0))
    set_exec(a, 0xffffffff)
    for ct in range(4):
        for j in range(4):
            a("ds_write_b32 v%d, v%d offset:%d" % (vT0, C + 4 * ct + j, L_RED + j * 256 + ct * 64))
    a("s_mov_b64 exec, -1")
    a.wait_lg_all()
    a.label("L_d_b6")
    a("s_barrier")
    a("s_cmp_ge_u32 s%d, 8" % sW)
    a("s_cbranch_scc1 L_fin")
    a("v_lshlrev_b32 v%d, 2, v0" % vT0)
    tg = [a("ds_read_b32 v%d, v%d offset:%d" % (8 + w, vT0, L_RED + w * 2048)) for w in range(9)]
    a("s_lshl_b32 s%d, s%d, 3" % (sT0, sR0))
    a("s_add_u32 s%d, s%d, s%d" % (sT0, sT0, sW))
    a("s_mul_i32 s%d, s%d, 2304" % (sT0, sT0))
    a("s_lshl_b32 s%d, s%d, 8" % (sT1, sR1))
    a("s_add_u32 s%d, s%d, s%d" % (sT0, sT0, sT1))
    a("s_add_u32 s%d, s%d, 0x%x" % (sT0, sT0, WS_P))
    a("v_lshlrev_b32 v%d, 2, v%d" % (vT1, vL))
    for w in range(1, 9):
        a.wait_lg(tg[w])
        a("v_add_f32 v8, v8, v%d" % (8 + w))
    a("buffer_store_dword v8, v%d, %s, s%d offen sc1" % (vT1, sr(sWS, 4), sT0))
    stamp(a, 1, True)
    a("s_cmp_lg_u32 s%d, 0" % sW)
    a("s_cbranch_scc1 L_fin")
    a("v_lshrrev_b32 v%d, 3, v%d" % (vT0, vL))
    a("v_mul_u32_u24 v%d, 576, v%d" % (vT0, vT0))
    a("v_and_b32 v%d, 7, v%d" % (vT1, vL))
    a("v_add_u32 v%d, v%d, v%d" % (vT0, vT0, vT1))
    a("s_lshl_b32 s%d, s%d, 6" % (sT0, sR1))
    a("s_lshl_b32 s%d, s%d, 3" % (sT1, sR0))
    a("s_add_u32 s%d, s%d, s%d" % (sT0, sT0, sT1))
    a("v_add_u32 v%d, s%d, v%d" % (vT0, sT0, vT0))
    a("v_lshlrev_b32 v%d, 1, v%d" % (vT1, vT0))
    a("v_lshlrev_b32 v%d, 2, v%d" % (vT0, vT0))
    srd(a, sA, P_X, 9216)
    srd(a, sB_, P_OUT, 9216)
    a("buffer_load_ushort v20, v%d, %s, 0 offen" % (vT1, sr(sA, 4)))
    a("s_mov_b32 s%d, 0x%x" % (sT0, WS_ACC1))
    a("buffer_load_dword v21, v%d, %s, s%d offen sc1" % (vT0, sr(sWS, 4), sT0))
    for k in range(8):
        a("s_mov_b32 s%d, 0x%x" % (sQD + k, WS_P + k * 18432))
    a("s_mov_b32 s%d, 0" % sSPIN)
    a.label("L_f_poll")
    for k in range(8):
        a("buffer_load_dword v%d, v%d, %s, s%d offen sc1" % (8 + k, vT0, sr(sWS, 4), sQD + k))
    a("s_add_u32 s%d, s%d, 1" % (sSPIN, sSPIN))
    a.wait_vm_all()
    a("v_max_u32 v16, v8, v9")
    a("v_max3_u32 v16, v16, v10, v11")
    a("v_max3_u32 v16, v16, v12, v13")
    a("v_max3_u32 v16, v16, v14, v15")
    a("v_cmp_eq_u32 vcc, -1, v16")
    a("s_cbranch_vccz L_f_ok")
    a("s_cmp_lt_u32 s%d, %d" % (sSPIN, SPIN_MAX))
    a("s_cbranch_scc1 L_f_poll")
    a.label("L_f_ok")
    for k in range(1, 8):
        a("v_add_f32 v8, v8, v%d" % (8 + k))
    bf16r(a, 8, 8)
    a("v_lshlrev_b32 v20, 16, v20")
    bf16r(a, 21, 21)
    a("v_add_f32 v20, v20, v21")
    bf16r(a, 20, 20)
    a("v_add_f32 v20, v20, v8")
    a("v_cvt_pk_bf16_f32 v20, v20, v20")
    a("buffer_store_short v20, v%d, %s, 0 offen" % (vT1, sr(sB_, 4)))
    a.label("L_fin")
    if OPT["stamp"]:
        stamp(a, 7)
        a("s_waitcnt lgkmcnt(0)")
        for i in range(NSTAMP):
            a("v_writelane_b32 v126, s%d, %d" % (sST + 2 * i, i))
        a("v_lshlrev_b32 v127, 2, v%d" % vL)
        a("s_lshl_b32 s%d, s2, 4" % sT0)
        a("s_add_u32 s%d, s%d, s%d" % (sT0, sT0, sW))
        a("s_lshl_b32 s%d, s%d, 6" % (sT0, sT0))
        a("s_add_u32 s%d, s%d, 0x%x" % (sT0, sT0, WS_STAMP))
        a("s_mov_b64 exec, 0xffff")
        a("buffer_store_dword v126, v127, %s, s%d offen" % (sr(sWS, 4), sT0))
    a.label("L_end")
    a("s_endpgm")
    nv = (a.maxv + 8) // 8 * 8
    a.raw(""".section .rodata,"a"
.p2align 6
.amdhsa_kernel %s
  .amdhsa_next_free_vgpr %d
  .amdhsa_next_free_sgpr %d
  .amdhsa_accum_offset %d
  .amdhsa_group_segment_fixed_size 0
  .amdhsa_kernarg_size 96
  .amdhsa_user_sgpr_count 2
  .amdhsa_user_sgpr_kernarg_segment_ptr 1
  .amdhsa_system_sgpr_workgroup_id_x 1
  .amdhsa_float_denorm_mode_32 3
.end_amdhsa_kernel
""" % (name, nv, a.maxs + 1, nv))
    hdr = open("cdna_kernels/%s.s.ref" % NAME).read().split("; @launch")[0]
    hdr += "; @launch grid=(256,1,1) block=(1024,1,1) lds=%d\n" % LDS_BYTES
    hdr += '.amdgcn_target "amdgcn-amd-amdhsa--gfx950"\n.text\n'
    return hdr + a.text()


if __name__ == "__main__":
    args = sys.argv[1:]
    for k in list(args):
        if "=" in k:
            OPT[k[2:].split("=")[0]] = int(k.split("=")[1]); args.remove(k)
    for k in ("nowdma", "noclr", "wqnt"):
        if "--" + k in args:
            OPT[k] = True
            args.remove("--" + k)
    if "--qdbg" in args:
        OPT["qdbg"] = True
        args.remove("--qdbg")
    if "--stamp" in args:
        OPT["stamp"] = True
        args.remove("--stamp")
    out = args[0] if args else "cdna_kernels/%s.s" % NAME
    open(out, "w").write(gen())
```

```python
import sys, struct, math
from asmlib import Asm, vr, sr

NAME = "sequential_preLN__gqa_block_cached__geglu_ffn__decode"
KNAME = NAME + "_kernel"

LOG2E = 0x3FB8AA3B
SCALE = 0x3DB504F3
INV576 = struct.unpack("<I", struct.pack("<f", 1.0 / 576.0))[0]
EPS = struct.unpack("<I", struct.pack("<f", 1e-5))[0]

WS_Q = 0x0
WS_PART = 0x20000
WS_STAT = 0xA0000
WS_Z = 0xA2000
WS_EPOCH = 0xA2800
WS_CNT = 0xA4000
WS_ACC1 = 0xB0000
WS_T = 0xC0000
WS_P = 0xD2000
WS_SIZE = 0x200000
WS_STAMP = 0x100000

P_X, P_K, P_V, P_WQ, P_WO, P_BX, P_WG, P_WU, P_WD, P_OUT, P_DBG, P_WS = [4 + 2 * i for i in range(12)]
DPP = " row_mask:0xf bank_mask:0xf"

L_CNT = 0
L_ML = 64
L_QS = 512
L_ACT = 1024
ACT_PITCH = 1168
O_ACT_PITCH = 1040
L_RED = 10368
L_W = 28800
LDS_BYTES = L_W + 73728

SPIN_MAX = 100000
OPT = dict(stamp=0, win=12, pw=4, noqwait=0, nocomp=0, wb=8, wq=30)


def f32(x):
    return "0x%08x" % struct.unpack("<I", struct.pack("<f", x))[0]


def set_exec(a, m):
    a("s_mov_b32 exec_lo, 0x%x" % (m & 0xffffffff))
    a("s_mov_b32 exec_hi, 0x%x" % (m >> 32))


def srd(a, d, ptr, nbytes, off=None):
    if off is None:
        a("s_mov_b32 s%d, s%d" % (d, ptr))
        a("s_mov_b32 s%d, s%d" % (d + 1, ptr + 1))
    else:
        a("s_add_u32 s%d, s%d, %s" % (d, ptr, off))
        a("s_addc_u32 s%d, s%d, 0" % (d + 1, ptr + 1))
    a("s_mov_b32 s%d, %s" % (d + 2, nbytes if isinstance(nbytes, str) else "0x%x" % nbytes))
    a("s_mov_b32 s%d, 0x00020000" % (d + 3))


def allreduce(a, v, t, op="add", lo=True, hi=True):
    ins = "v_%s_f32" % op
    if lo:
        for m in ("quad_perm:[1,0,3,2]", "quad_perm:[2,3,0,1]", "row_half_mirror", "row_mirror"):
            a("%s_dpp v%d, v%d, v%d %s%s" % (ins, v, v, v, m, DPP))
    if hi:
        for sw in ("v_permlane16_swap_b32", "v_permlane32_swap_b32"):
            a("v_mov_b32 v%d, v%d" % (t, v))
            a("%s v%d, v%d" % (sw, v, t))
            a("%s v%d, v%d, v%d" % (ins, v, v, t))


def bf16r(a, d, s):
    a("v_cvt_pk_bf16_f32 v%d, v%d, v%d" % (d, s, s))
    a("v_lshlrev_b32 v%d, 16, v%d" % (d, d))


def layernorm9(a, xs, t0):
    s, t, mean, sd, rc, e = t0, t0 + 1, t0 + 2, t0 + 3, t0 + 4, t0 + 5
    a("v_add_f32 v%d, v%d, v%d" % (s, xs[0], xs[1]))
    for i in range(2, 9):
        a("v_add_f32 v%d, v%d, v%d" % (s, s, xs[i]))
    allreduce(a, s, t)
    a("v_mul_f32 v%d, 0x%08x, v%d" % (mean, INV576, s))
    a("v_sub_f32 v%d, v%d, v%d" % (t, xs[0], mean))
    a("v_mul_f32 v%d, v%d, v%d" % (s, t, t))
    for i in range(1, 9):
        a("v_sub_f32 v%d, v%d, v%d" % (t, xs[i], mean))
        a("v_fmac_f32 v%d, v%d, v%d" % (s, t, t))
    allreduce(a, s, t)
    a("v_mul_f32 v%d, 0x%08x, v%d" % (s, INV576, s))
    bf16r(a, s, s)
    a("v_add_f32 v%d, 0x%08x, v%d" % (s, EPS, s))
    bf16r(a, s, s)
    a("v_sqrt_f32 v%d, v%d" % (sd, s))
    bf16r(a, mean, mean)
    a("v_rcp_f32 v%d, v%d" % (rc, sd))
    a("v_fma_f32 v%d, -v%d, v%d, v%d" % (e, sd, sd, s))
    a("v_mul_f32 v%d, 0.5, v%d" % (rc, rc))
    a("v_fmac_f32 v%d, v%d, v%d" % (sd, e, rc))
    bf16r(a, sd, sd)
    a("v_rcp_f32 v%d, v%d" % (rc, sd))
    for i in range(9):
        a("v_sub_f32 v%d, v%d, v%d" % (xs[i], xs[i], mean))
        bf16r(a, xs[i], xs[i])
    for i in range(9):
        x = xs[i]
        a("v_mul_f32 v%d, v%d, v%d" % (t, x, rc))
        a("v_fma_f32 v%d, -v%d, v%d, v%d" % (e, t, sd, x))
        a("v_fma_f32 v%d, v%d, v%d, v%d" % (x, e, rc, t))


def gelu(a, x, y, t):
    c = -2.0 * math.sqrt(2.0 / math.pi) * 1.4426950408889634
    a("v_mul_f32 v%d, v%d, v%d" % (t, x, x))
    a("v_mul_f32 v%d, %s, v%d" % (t, f32(0.044715), t))
    a("v_fma_f32 v%d, v%d, v%d, v%d" % (y, t, x, x))
    a("v_mul_f32 v%d, %s, v%d" % (y, f32(c), y))
    a("v_exp_f32 v%d, v%d" % (y, y))
    a("v_add_f32 v%d, 1.0, v%d" % (y, y))
    a("v_rcp_f32 v%d, v%d" % (y, y))
    a("v_mul_f32 v%d, v%d, v%d" % (x, x, y))


def fix2f(a, d, lo, hi):
    a("v_and_b32 v%d, -16, v%d" % (lo, lo))
    a("v_cvt_f32_u32 v%d, v%d" % (lo, lo))
    a("v_cvt_f32_i32 v%d, v%d" % (d, hi))
    a("v_fmac_f32 v%d, 0x2f800000, v%d" % (d, lo))


sSPIN, sTAG = 1, 3
sK, sV, sWS, sA, sB_ = 28, 32, 36, 40, 44
sNU = 48
sGR = 50
sW, sHKV, sBB, sHALF, sLID = 52, 53, 54, 55, 56
sT0, sT1, sT2, sT3 = 57, 58, 59, 60
sCUR0, sCUR1, sNEW, sOFF = 61, 62, 63, 64
sHI, sL2E, sEPO = 65, 66, 67
sQD = 68
sR0, sR1 = 84, 85
sST = 86
NSTAMP = 8

vL, vKO, vVO, vT0, vT1, vT2, vT3 = 1, 2, 3, 4, 5, 6, 7
vM, vQ, vACC, vB, vC = 8, 12, 16, 20, 28
vMX, vLS, vNM, vIDX = 44, 45, 46, 47
vS = 48
vRING = 56
vZ, vONE = 120, 121


def stamp(a, i):
    if OPT["stamp"]:
        a.raw("    s_memrealtime s[%d:%d]" % (sST + 2 * i, sST + 1 + 2 * i))
        a.maxs = max(a.maxs, sST + 1 + 2 * i)


def dma_tile(a, nload, lanes_per_row_log2, row_stride, sRow0, lds_base, sd, nt=True):
    k = lanes_per_row_log2
    rows_per_load = 64 >> k
    a("v_lshrrev_b32 v%d, %d, v%d" % (vT0, k, vL))
    a("v_add_u32 v%d, s%d, v%d" % (vT0, sRow0, vT0))
    if row_stride == 8192:
        a("v_lshlrev_b32 v%d, 13, v%d" % (vT0, vT0))
    else:
        a("v_mul_u32_u24 v%d, %d, v%d" % (vT0, row_stride, vT0))
    a("v_and_b32 v%d, %d, v%d" % (vT1, (1 << k) - 1, vL))
    a("v_lshl_add_u32 v%d, v%d, 4, v%d" % (vT0, vT1, vT0))
    a("s_lshl_b32 s%d, s%d, %d" % (sT0, sRow0, 4 + k))
    a("s_add_u32 s%d, s%d, %s" % (sT0, sT0, lds_base))
    a("s_mov_b32 s%d, 0" % sT1)
    for i in range(nload):
        a("s_mov_b32 m0, s%d" % sT0)
        a("buffer_load_dwordx4 v%d, %s, s%d offen %slds" % (vT0, sr(sd, 4), sT1, "nt " if nt else ""))
        if i < nload - 1:
            a("s_add_u32 s%d, s%d, 1024" % (sT0, sT0))
            a("s_add_u32 s%d, s%d, %d" % (sT1, sT1, rows_per_load * row_stride))


def frag_addrs(a, vA, vBa, act_pitch, row_log2):
    a("v_and_b32 v%d, 7, v%d" % (vA, vL))
    a("v_mul_u32_u24 v%d, %d, v%d" % (vA, act_pitch, vA))
    a("v_lshrrev_b32 v%d, 4, v%d" % (vT1, vL))
    a("v_lshl_add_u32 v%d, v%d, 4, v%d" % (vA, vT1, vA))
    a("v_bfe_u32 v%d, v%d, 2, 2" % (vBa, vL))
    a("v_lshl_add_u32 v%d, v%d, 3, v%d" % (vBa, vT1, vBa))
    a("v_lshlrev_b32 v%d, %d, v%d" % (vBa, row_log2, vBa))
    a("v_and_b32 v%d, 3, v%d" % (vT3, vL))
    a("v_lshl_add_u32 v%d, v%d, 3, v%d" % (vBa, vT3, vBa))


def gen():
    a = Asm()
    name = KNAME
    a.raw(".globl %s\n.p2align 8\n.type %s,@function\n%s:" % (name, name, name))
    a("s_cmp_ge_u32 s2, 256")
    a("s_cbranch_scc1 L_end")
    a("s_load_dwordx16 s[4:19], s[0:1], 0")
    a("s_load_dwordx8 s[20:27], s[0:1], 64")
    if OPT["stamp"]:
        for i in range(NSTAMP):
            a("s_mov_b32 s%d, 0" % (sST + 2 * i))
    stamp(a, 0)
    a("v_and_b32 v%d, 63, v0" % vL)
    a("v_lshrrev_b32 v%d, 6, v0" % vT0)
    a("v_readfirstlane_b32 s%d, v%d" % (sW, vT0))
    a("s_lshr_b32 s%d, s2, 7" % sHALF)
    a("s_and_b32 s%d, s2, 127" % sT3)
    a("s_xor_b32 s%d, s%d, s%d" % (sT3, sT3, sHALF))
    a("s_and_b32 s%d, s%d, 15" % (sHKV, sT3))
    a("s_lshr_b32 s%d, s%d, 4" % (sBB, sT3))
    a("s_lshl_b32 s%d, s%d, 4" % (sLID, sHKV))
    a("s_lshl_b32 s%d, s%d, 1" % (sT0, sBB))
    a("s_add_u32 s%d, s%d, s%d" % (sLID, sLID, sT0))
    a("s_add_u32 s%d, s%d, s%d" % (sLID, sLID, sHALF))
    a("s_mov_b32 s%d, 0xffff0000" % sHI)
    a("s_mov_b32 s%d, 0x%08x" % (sL2E, LOG2E))
    a("s_mov_b32 s%d, s%d" % (sCUR0, sW))
    a("s_add_u32 s%d, s%d, 16" % (sCUR1, sW))
    def role_w(dst, src):
        a("s_cmp_lt_u32 s%d, 136" % src)
        a("s_cselect_b32 s%d, %d, 0" % (dst, OPT["wq"] // 2))
        a("s_cmp_lt_u32 s%d, 72" % src)
        a("s_cselect_b32 s%d, %d, s%d" % (dst, OPT["wb"] // 2, dst))
    a("s_xor_b32 s%d, s%d, 0x81" % (sT0, sT3))
    role_w(sT1, sT0)
    role_w(sT2, sT3)
    a("s_add_u32 s%d, s%d, 128" % (sT1, sT1))
    a("s_sub_u32 s%d, s%d, s%d" % (sT1, sT1, sT2))
    a("s_sub_u32 s%d, 256, s%d" % (sT2, sT1))
    a("s_cmp_eq_u32 s%d, 0" % sHALF)
    a("s_cselect_b32 s%d, s%d, s%d" % (sNU, sT1, sT2))
    a("s_cselect_b32 s%d, 0, s%d" % (sGR, sT1))
    a("v_bfe_u32 v%d, v%d, 2, 2" % (vT0, vL))
    a("v_lshlrev_b32 v%d, 8, v%d" % (vKO, vT0))
    a("v_lshrrev_b32 v%d, 4, v%d" % (vT1, vL))
    a("v_lshl_add_u32 v%d, v%d, 6, v%d" % (vKO, vT1, vKO))
    a("v_and_b32 v%d, 3, v%d" % (vT0, vL))
    a("v_lshl_add_u32 v%d, v%d, 4, v%d" % (vKO, vT0, vKO))
    a("v_lshlrev_b32 v%d, 4, v%d" % (vVO, vL))
    a("v_mov_b32 v%d, 0" % vZ)
    a("v_mov_b32 v%d, 1" % vONE)
    a("s_waitcnt lgkmcnt(0)")
    a("s_load_dword s%d, s[%d:%d], 0x%x" % (sEPO, P_WS, P_WS + 1, WS_EPOCH))
    a("s_lshl_b32 s%d, s%d, 20" % (sT0, sT3))
    a("s_lshl_b32 s%d, s%d, 12" % (sT1, sGR))
    a("s_add_u32 s%d, s%d, s%d" % (sT0, sT0, sT1))
    a("s_lshl_b32 s%d, s%d, 12" % (sT2, sNU))
    srd(a, sK, P_K, "s%d" % sT2, "s%d" % sT0)
    srd(a, sV, P_V, "s%d" % sT2, "s%d" % sT0)
    srd(a, sWS, P_WS, WS_SIZE)

    def get_tag():
        a("s_waitcnt lgkmcnt(0)")
        a("s_add_u32 s%d, s%d, 1" % (sEPO, sEPO))
        a("s_mul_i32 s%d, s%d, 0x9E3779B1" % (sTAG, sEPO))

    def masks():
        a("v_and_b32 v%d, 1, v%d" % (vT0, vL))
        a("v_lshlrev_b32 v%d, 4, v%d" % (vT0, vT0))
        a("v_mov_b32 v%d, 0xffff" % vT2)
        a("v_lshlrev_b32 v%d, v%d, v%d" % (vT2, vT0, vT2))
        a("v_bfe_u32 v%d, v%d, 1, 2" % (vT0, vL))
        for j in range(4):
            a("v_cmp_eq_u32 vcc, %d, v%d" % (j, vT0))
            a("v_cndmask_b32 v%d, 0, v%d, vcc" % (vM + j, vT2))

    def ring_fill():
        PW = OPT["pw"]
        for s_, cur in ((0, sCUR0), (1, sCUR1)):
            a("s_lshl_b32 s%d, s%d, 12" % (sOFF, cur))
            for j in range(4):
                if PW < 16:
                    a("s_waitcnt vmcnt(%d)" % (PW - 1))
                a("buffer_load_dwordx4 %s, v%d, %s, s%d offen offset:%d nt" % (vr(vRING + 32 * s_ + 4 * j, 4), vKO, sr(sK, 4), sOFF, j * 1024))
            for j in range(4):
                if PW < 16:
                    a("s_waitcnt vmcnt(%d)" % (PW - 1))
                a("buffer_load_dwordx4 %s, v%d, %s, s%d offen offset:%d nt" % (vr(vRING + 32 * s_ + 16 + 4 * j, 4), vVO, sr(sV, 4), sOFF, j * 1024))

    def housekeeping(tagl):
        a("s_cmp_lt_u32 s%d, 13" % sW)
        a("s_cbranch_scc1 %s_done" % tagl)
        a("s_cmp_eq_u32 s%d, 14" % sW)
        a("s_cbranch_scc1 %s_clr" % tagl)
        a("s_cmp_eq_u32 s%d, 13" % sW)
        a("s_cbranch_scc1 %s_zero" % tagl)
        a("v_mov_b32 v16, 32")
        a("ds_write_b32 v%d, v16 offset:%d" % (vZ, L_CNT))
        a("s_branch %s_done" % tagl)
        a.label("%s_clr" % tagl)
        for j in range(4):
            a("v_mov_b32 v%d, -1" % (16 + j))
        a("s_lshl_b32 s%d, s%d, 10" % (sT1, sLID))
        a("s_add_u32 s%d, s%d, 0x%x" % (sT1, sT1, WS_T))
        a("s_cmp_lt_u32 s%d, 216" % sLID)
        a("s_cselect_b32 s%d, s%d, 0x%x" % (sT1, sT1, WS_SIZE))
        a("buffer_store_dwordx4 %s, v%d, %s, s%d offen sc1" % (vr(16, 4), vVO, sr(sWS, 4), sT1))
        a("s_branch %s_done" % tagl)
        a.label("%s_zero" % tagl)
        a("s_cmp_lg_u32 s2, 255")
        a("s_cbranch_scc1 %s_done" % tagl)
        for j in range(4):
            a("v_mov_b32 v%d, 0" % (16 + j))
        a("s_mov_b32 s%d, 0x%x" % (sT1, WS_ACC1))
        for i in range(9):
            for j in range(4):
                a("buffer_store_dwordx4 %s, v%d, %s, s%d offen offset:%d sc1" % (vr(16, 4), vVO, sr(sWS, 4), sT1, j * 1024))
            if i < 8:
                a("s_add_u32 s%d, s%d, 4096" % (sT1, sT1))
        a("s_waitcnt vmcnt(0) lgkmcnt(0)")
        a("s_add_u32 s%d, s%d, 1" % (sT0, sEPO))
        a("s_mul_i32 s%d, s%d, 0x9E3779B1" % (sT0, sT0))
        a("v_mov_b32 v20, s%d" % sT0)
        a("s_mov_b32 s%d, 0x%x" % (sT1, WS_Z))
        a("s_mov_b64 exec, 1")
        a("buffer_store_dword v20, v%d, %s, s%d offen sc1" % (vZ, sr(sWS, 4), sT1))
        a("s_mov_b64 exec, -1")
        a.label("%s_done" % tagl)

    a("s_sub_u32 s%d, s2, 72" % sR0)
    a("s_cmp_lt_u32 s%d, 64" % sR0)
    a("s_cbranch_scc1 L_qprod")
    housekeeping("L_hk0")
    a("s_cmp_ge_u32 s2, 72")
    a("s_cbranch_scc1 L_np_ring")
    a("s_and_b32 s%d, s2, 7" % sT0)
    a("s_lshr_b32 s%d, s2, 3" % sT1)
    a("s_mul_i32 s%d, s%d, %d" % (sT0, sT0, 512 * 1152))
    a("s_lshl_b32 s%d, s%d, 7" % (sT1, sT1))
    a("s_add_u32 s%d, s%d, s%d" % (sT0, sT0, sT1))
    srd(a, sB_, P_WO, 511 * 1152 + 128, "s%d" % sT0)
    a("s_lshl_b32 s%d, s%d, 5" % (sT2, sW))
    dma_tile(a, 4, 3, 1152, sT2, str(L_W), sB_)
    a.label("L_np_ring")
    ring_fill()
    masks()
    get_tag()
    a("s_branch L_gather")

    a.label("L_qprod")
    xs = list(range(16, 25))
    a("s_cmp_ge_u32 s%d, 8" % sW)
    a("s_cbranch_scc1 L_qp_hi")
    a("s_mul_i32 s%d, s%d, 1152" % (sT0, sW))
    srd(a, sA, P_X, 1152, "s%d" % sT0)
    a("v_lshlrev_b32 v%d, 1, v%d" % (vT0, vL))
    for e in range(9):
        a("buffer_load_ushort v%d, v%d, %s, 0 offen offset:%d" % (xs[e], vT0, sr(sA, 4), e * 128))
    masks()
    a("s_mul_i32 s%d, s%d, %d" % (sT0, sW, ACT_PITCH))
    a("v_lshlrev_b32 v%d, 1, v%d" % (vT0, vL))
    a("v_add_u32 v%d, s%d, v%d" % (vT0, sT0, vT0))
    a.wait_vm_all()
    for e in range(9):
        a("v_lshlrev_b32 v%d, 16, v%d" % (xs[e], xs[e]))
    layernorm9(a, xs, 26)
    for e in range(9):
        a("v_cvt_pk_bf16_f32 v%d, v%d, v%d" % (xs[e], xs[e], xs[e]))
        a("ds_write_b16 v%d, v%d offset:%d" % (vT0, xs[e], L_ACT + e * 128))
    a("s_branch L_qp_b1")
    a.label("L_qp_hi")
    a("s_lshl_b32 s%d, s%d, 7" % (sT0, sR0))
    srd(a, sB_, P_WQ, 575 * 8192 + 128, "s%d" % sT0)
    a("s_sub_u32 s%d, s%d, 8" % (sT2, sW))
    a("s_mul_i32 s%d, s%d, 72" % (sT2, sT2))
    dma_tile(a, 9, 3, 8192, sT2, str(L_W), sB_)
    housekeeping("L_hk1")
    masks()
    a.wait_vm_all()
    a.label("L_qp_b1")
    get_tag()
    a.lgq = []
    a("s_barrier")
    a("s_cmp_ge_u32 s%d, 12" % sW)
    a("s_cbranch_scc1 L_qp_b2")
    frag_addrs(a, vT0, vT2, ACT_PITCH, 7)
    a("s_lshr_b32 s%d, s%d, 2" % (sT0, sW))
    a("s_mul_i32 s%d, s%d, 384" % (sT1, sT0))
    a("v_add_u32 v%d, s%d, v%d" % (vT0, sT1, vT0))
    a("s_mul_i32 s%d, s%d, %d" % (sT0, sT0, 192 * 128))
    a("s_and_b32 s%d, s%d, 3" % (sT1, sW))
    a("s_lshl_b32 s%d, s%d, 5" % (sT1, sT1))
    a("s_add_u32 s%d, s%d, s%d" % (sT0, sT0, sT1))
    a("s_add_u32 s%d, s%d, %d" % (sT0, sT0, L_W))
    a("v_add_u32 v%d, s%d, v%d" % (vT2, sT0, vT2))
    A0, B0, C = 56, 80, 104
    tg = []
    for s_ in range(6):
        a("ds_read_b128 %s, v%d offset:%d" % (vr(A0 + 4 * s_, 4), vT0, L_ACT + s_ * 64))
        a("ds_read_b64_tr_b16 %s, v%d offset:%d" % (vr(B0 + 4 * s_, 2), vT2, s_ * 4096))
        tg.append(a("ds_read_b64_tr_b16 %s, v%d offset:%d" % (vr(B0 + 4 * s_ + 2, 2), vT2, s_ * 4096 + 512)))
    a("v_lshlrev_b32 v%d, 8, v%d" % (vT0, vT1))
    a("v_and_b32 v%d, 15, v%d" % (vT2, vL))
    a("v_lshl_add_u32 v%d, v%d, 2, v%d" % (vT0, vT2, vT0))
    a("s_lshl_b32 s%d, s%d, 9" % (sT0, sW))
    a("v_add_u32 v%d, s%d, v%d" % (vT0, sT0, vT0))
    for s_ in range(6):
        a.wait_lg(tg[s_])
        a("v_mfma_f32_16x16x32_bf16 %s, %s, %s, %s" % (vr(C, 4), vr(A0 + 4 * s_, 4), vr(B0 + 4 * s_, 4), "0" if s_ == 0 else vr(C, 4)))
    set_exec(a, 0xffffffff)
    for j in range(4):
        a("ds_write_b32 v%d, v%d offset:%d" % (vT0, C + j, L_RED + j * 64))
    a("s_mov_b64 exec, -1")
    a.wait_lg_all()
    a.label("L_qp_b2")
    a("s_barrier")
    a("s_cmp_ge_u32 s%d, 4" % sW)
    a("s_cbranch_scc1 L_qp_ring")
    a("v_lshlrev_b32 v%d, 3, v%d" % (vT0, vL))
    a("s_lshl_b32 s%d, s%d, 9" % (sT0, sW))
    a("v_add_u32 v%d, s%d, v%d" % (vT0, sT0, vT0))
    for kp in range(3):
        a("ds_read_b64 %s, v%d offset:%d" % (vr(16 + 2 * kp, 2), vT0, L_RED + kp * 2048))
    a("v_lshrrev_b32 v%d, 3, v%d" % (vT1, vL))
    a("v_lshlrev_b32 v%d, 14, v%d" % (vT1, vT1))
    a("v_and_b32 v%d, 7, v%d" % (vT2, vL))
    a("v_lshl_add_u32 v%d, v%d, 3, v%d" % (vT1, vT2, vT1))
    a("s_lshl_b32 s%d, s%d, 8" % (sT0, sR0))
    a("s_lshl_b32 s%d, s%d, 6" % (sT1, sW))
    a("s_add_u32 s%d, s%d, s%d" % (sT0, sT0, sT1))
    a.wait_lg_all()
    a("v_add_f32 v16, v16, v18")
    a("v_add_f32 v17, v17, v19")
    a("v_add_f32 v16, v16, v20")
    a("v_add_f32 v17, v17, v21")
    a("v_cvt_pk_bf16_f32 v16, v16, v17")
    a("v_mov_b32 v17, s%d" % sTAG)
    a("buffer_store_dwordx2 v[16:17], v%d, %s, s%d offen sc1" % (vT1, sr(sWS, 4), sT0))
    stamp(a, 2)
    a.label("L_qp_ring")
    a("s_barrier")
    ring_fill()

    a.label("L_gather")
    a.vmq = []
    a("s_lshl_b32 s%d, s%d, 4" % (sT0, sHKV))
    a("s_add_u32 s%d, s%d, s%d" % (sT0, sT0, sW))
    a("s_lshl_b32 s%d, s%d, 6" % (sT0, sT0))
    a("s_lshl_b32 s%d, s%d, 14" % (sT2, sBB))
    a("s_add_u32 s%d, s%d, s%d" % (sT0, sT0, sT2))
    a("s_add_u32 s%d, s%d, s%d" % (sA, P_WS, sT0))
    a("s_addc_u32 s%d, s%d, 0" % (sA + 1, P_WS + 1))
    a("s_mov_b32 s%d, 0" % sSPIN)
    a.label("L_q_poll")
    a("s_load_dwordx16 s[%d:%d], s[%d:%d], 0 glc" % (sQD, sQD + 15, sA, sA + 1))
    a("s_waitcnt lgkmcnt(0)")
    a("s_add_u32 s%d, s%d, 1" % (sSPIN, sSPIN))
    a("s_xor_b32 s%d, s%d, s%d" % (sT0, sQD + 1, sTAG))
    for j in range(1, 8):
        a("s_xor_b32 s%d, s%d, s%d" % (sT1, sQD + 2 * j + 1, sTAG))
        a("s_or_b32 s%d, s%d, s%d" % (sT0, sT0, sT1))
    a("s_cmp_eq_u32 s%d, 0" % sT0)
    if OPT["noqwait"]:
        a("s_branch L_q_seen")
    a("s_cbranch_scc1 L_q_seen")
    a("s_sleep 12")
    a("s_cmp_lt_u32 s%d, %d" % (sSPIN, SPIN_MAX))
    a("s_cbranch_scc1 L_q_poll")
    a.label("L_q_seen")

    def grab():
        a("s_mov_b64 exec, 1")
        a("ds_add_rtn_u32 v%d, v%d, v%d offset:%d" % (vIDX, vZ, vONE, L_CNT))
        a("s_mov_b64 exec, -1")

    a("s_lshl_b32 s%d, s%d, 5" % (sT0, sW))
    a("v_mov_b32 v%d, s%d" % (vT0, sT0))
    for j in range(8):
        a("v_mov_b32 v%d, s%d" % (16 + j, sQD + 2 * j))
    a("s_mov_b64 exec, 1")
    a("ds_write_b128 v%d, %s offset:%d" % (vT0, vr(16, 4), L_QS))
    a("ds_write_b128 v%d, %s offset:%d" % (vT0, vr(20, 4), L_QS + 16))
    a("s_mov_b64 exec, -1")
    a("v_lshrrev_b32 v%d, 4, v%d" % (vT0, vL))
    a("v_and_b32 v%d, 3, v%d" % (vT1, vL))
    a("v_lshl_add_u32 v%d, v%d, 2, v%d" % (vT0, vT0, vT1))
    a("v_bfe_u32 v%d, v%d, 3, 1" % (vT1, vL))
    a("v_lshl_add_u32 v%d, v%d, 4, v%d" % (vT0, vT1, vT0))
    a("v_lshlrev_b32 v%d, 4, v%d" % (vT0, vT0))
    a.wait_lg_all()
    a("s_barrier")
    a("ds_read_b128 %s, v%d offset:%d" % (vr(vQ, 4), vT0, L_QS))
    grab()
    a("v_mov_b32 v%d, 0xff800000" % vMX)
    a("v_mov_b32 v%d, 0" % vLS)
    for j in range(4):
        a("v_mov_b32 v%d, 0" % (vACC + j))
    stamp(a, 3)

    def body(s_, cur):
        kb = vRING + 32 * s_
        vb = kb + 16
        a.wait_lg_all()
        a("v_readfirstlane_b32 s%d, v%d" % (sNEW, vIDX))
        grab()
        a("s_lshl_b32 s%d, s%d, 12" % (sOFF, sNEW))
        if OPT["nocomp"]:
            for j in range(4):
                a("s_waitcnt vmcnt(%d)" % (OPT["win"] - 1))
                a("buffer_load_dwordx4 %s, v%d, %s, s%d offen offset:%d nt" % (vr(kb + 4 * j, 4), vKO, sr(sK, 4), sOFF, j * 1024))
            for j in range(4):
                a("s_waitcnt vmcnt(%d)" % (OPT["win"] - 1))
                a("buffer_load_dwordx4 %s, v%d, %s, s%d offen offset:%d nt" % (vr(vb + 4 * j, 4), vVO, sr(sV, 4), sOFF, j * 1024))
            a("s_mov_b32 s%d, s%d" % (cur, sNEW))
            a.vmq = []
            return
        for j in range(4):
            a("s_waitcnt vmcnt(%d)" % (OPT["win"] - 1))
            a("v_mfma_f32_16x16x32_bf16 %s, %s, %s, 0" % (vr(vC + 4 * j, 4), vr(kb + 4 * j, 4), vr(vQ, 4)))
            a("buffer_load_dwordx4 %s, v%d, %s, s%d offen offset:%d nt" % (vr(kb + 4 * j, 4), vKO, sr(sK, 4), sOFF, j * 1024))
        for j in range(4):
            c = vC + 4 * j
            t = vS + j
            a("v_mov_b32_dpp v%d, v%d quad_perm:[0,0,0,0]%s" % (t, c, DPP))
            for i in range(1, 4):
                a("v_add_f32_dpp v%d, v%d, v%d quad_perm:[%d,%d,%d,%d]%s" % (t, c + i, t, i, i, i, i, DPP))
        for h in range(2):
            x, y, p = vS + 2 * h, vS + 2 * h + 1, vS + 4 + h
            a("v_cvt_pk_bf16_f32 v%d, v%d, v%d" % (p, x, y))
            a("v_lshlrev_b32 v%d, 16, v%d" % (x, p))
            a("v_and_b32 v%d, s%d, v%d" % (y, sHI, p))
            a("v_mul_f32 v%d, 0x%08x, v%d" % (x, SCALE, x))
            a("v_mul_f32 v%d, 0x%08x, v%d" % (y, SCALE, y))
            a("v_cvt_pk_bf16_f32 v%d, v%d, v%d" % (p, x, y))
            a("v_lshlrev_b32 v%d, 16, v%d" % (x, p))
            a("v_and_b32 v%d, s%d, v%d" % (y, sHI, p))
        mu, t = vS + 4, vS + 5
        a("v_max3_f32 v%d, v%d, v%d, v%d" % (mu, vS, vS + 1, vS + 2))
        a("v_max3_f32 v%d, v%d, v%d, v%d" % (mu, mu, vS + 3, vMX))
        allreduce(a, mu, t, "max", lo=False, hi=True)
        a("v_sub_f32 v%d, v%d, v%d" % (t, vMX, mu))
        a("v_mul_f32 v%d, 0x%08x, v%d" % (t, LOG2E, t))
        a("v_exp_f32 v%d, v%d" % (t, t))
        a("v_mov_b32 v%d, v%d" % (vMX, mu))
        a("v_mul_f32 v%d, 0x%08x, v%d" % (vNM, LOG2E ^ 0x80000000, mu))
        a("v_mul_f32 v%d, v%d, v%d" % (vLS, vLS, t))
        for j in range(4):
            a("v_mul_f32 v%d, v%d, v%d" % (vACC + j, vACC + j, t))
        for j in range(4):
            e = vS + j
            bb = vB + 4 * (j & 1)
            a("v_fma_f32 v%d, v%d, s%d, v%d" % (e, e, sL2E, vNM))
            a("v_exp_f32 v%d, v%d" % (e, e))
            a("v_add_f32 v%d, v%d, v%d" % (vLS, vLS, e))
            a("v_cvt_pk_bf16_f32 v%d, v%d, v%d" % (e, e, e))
            for i in range(4):
                a("v_and_b32 v%d, v%d, v%d" % (bb + i, e, vM + i))
            a("s_waitcnt vmcnt(%d)" % (OPT["win"] - 1))
            a("v_mfma_f32_16x16x32_bf16 %s, %s, %s, %s" % (vr(vACC, 4), vr(vb + 4 * j, 4), vr(bb, 4), vr(vACC, 4)))
            a("buffer_load_dwordx4 %s, v%d, %s, s%d offen offset:%d nt" % (vr(vb + 4 * j, 4), vVO, sr(sV, 4), sOFF, j * 1024))
        a("s_mov_b32 s%d, s%d" % (cur, sNEW))
        a.vmq = []

    a.label("L_loop")
    body(0, sCUR0)
    a("s_cmp_ge_u32 s%d, s%d" % (sCUR1, sNU))
    a("s_cbranch_scc1 L_loop_exit")
    body(1, sCUR1)
    a("s_cmp_lt_u32 s%d, s%d" % (sCUR0, sNU))
    a("s_cbranch_scc1 L_loop")
    a.label("L_loop_exit")
    allreduce(a, vLS, vT1, "add", lo=False, hi=True)
    a("s_lshl_b32 s%d, s%d, 10" % (sT0, sW))
    a("v_add_u32 v%d, s%d, v%d" % (vT0, sT0, vVO))
    a("ds_write_b128 v%d, %s offset:%d" % (vT0, vr(vACC, 4), L_RED))
    a("v_bfe_u32 v%d, v%d, 3, 1" % (vT1, vL))
    a("v_lshlrev_b32 v%d, 3, v%d" % (vT1, vT1))
    a("s_lshl_b32 s%d, s%d, 4" % (sT0, sW))
    a("v_add_u32 v%d, s%d, v%d" % (vT2, sT0, vT1))
    a("ds_write_b64 v%d, %s offset:%d" % (vT2, vr(vMX, 2), L_ML))
    a.wait_all()
    a("s_barrier")
    stamp(a, 4)
    a("s_cmp_lg_u32 s%d, 0" % sW)
    a("s_cbranch_scc1 L_tail")
    ml = 56
    M, Ls, t = 8, 9, 10
    for w in range(16):
        a("ds_read_b64 %s, v%d offset:%d" % (vr(ml + 2 * w, 2), vT1, L_ML + w * 16))
    ovr = [16 + 4 * i for i in range(8)] + [88 + 4 * i for i in range(8)]
    otg = [a("ds_read_b128 %s, v%d offset:%d" % (vr(ovr[w], 4), vVO, L_RED + w * 1024)) for w in range(16)]
    a("s_waitcnt lgkmcnt(15)")
    a.lgq = a.lgq[-15:]
    a("v_max_f32 v%d, v%d, v%d" % (M, ml, ml + 2))
    for w in range(2, 16, 2):
        a("v_max3_f32 v%d, v%d, v%d, v%d" % (M, M, ml + 2 * w, ml + 2 * w + 2))
    for w in range(16):
        a("v_sub_f32 v%d, v%d, v%d" % (ml + 2 * w, ml + 2 * w, M))
        a("v_mul_f32 v%d, 0x%08x, v%d" % (ml + 2 * w, LOG2E, ml + 2 * w))
        a("v_exp_f32 v%d, v%d" % (ml + 2 * w, ml + 2 * w))
    O = 12
    for w in range(16):
        t = ml + 2 * w
        a.wait_lg(otg[w])
        if w == 0:
            a("v_mul_f32 v%d, v%d, v%d" % (Ls, t, ml + 1))
            for j in range(4):
                a("v_mul_f32 v%d, v%d, v%d" % (O + j, t, ovr[w] + j))
        else:
            a("v_fmac_f32 v%d, v%d, v%d" % (Ls, t, ml + 2 * w + 1))
            for j in range(4):
                a("v_fmac_f32 v%d, v%d, v%d" % (O + j, t, ovr[w] + j))
    for j in range(4):
        a("v_mov_b32 v%d, v%d" % (16 + 2 * j, O + j))
        a("v_mov_b32 v%d, s%d" % (17 + 2 * j, sTAG))
    a("v_mov_b32 v24, v%d" % M)
    a("v_mov_b32 v25, s%d" % sTAG)
    a("v_mov_b32 v26, v%d" % Ls)
    a("v_mov_b32 v27, s%d" % sTAG)
    a("v_lshlrev_b32 v%d, 5, v%d" % (vT0, vL))
    a("s_lshl_b32 s%d, s%d, 11" % (sT0, sLID))
    a("s_add_u32 s%d, s%d, 0x%x" % (sT0, sT0, WS_PART))
    a("buffer_store_dwordx4 %s, v%d, %s, s%d offen sc1" % (vr(16, 4), vT0, sr(sWS, 4), sT0))
    a("buffer_store_dwordx4 %s, v%d, %s, s%d offen offset:16 sc1" % (vr(20, 4), vT0, sr(sWS, 4), sT0))
    a("v_lshlrev_b32 v%d, 1, v%d" % (vT1, vT1))
    a("s_lshl_b32 s%d, s%d, 5" % (sT0, sLID))
    a("s_add_u32 s%d, s%d, 0x%x" % (sT0, sT0, WS_STAT))
    a("s_mov_b64 exec, 0x101")
    a("buffer_store_dwordx4 %s, v%d, %s, s%d offen sc1" % (vr(24, 4), vT1, sr(sWS, 4), sT0))
    a("s_mov_b64 exec, -1")

    a.label("L_tail")
    a("s_cmp_ge_u32 s2, 216")
    a("s_cbranch_scc1 L_fin")
    a("s_cmp_ge_u32 s2, 72")
    a("s_cbranch_scc1 L_GU")

    def acc_prepoll(lbl):
        a("v_lshlrev_b32 v%d, 9, v%d" % (vT2, vL))
        a("s_mov_b32 s%d, 0x%x" % (sT0, WS_ACC1))
        a("s_mov_b32 s%d, 0x%x" % (sT1, WS_Z))
        a("s_mov_b32 s%d, 0" % sSPIN)
        a("s_mov_b64 exec, 0x1ff")
        a.label(lbl)
        a("buffer_load_dword v41, v%d, %s, s%d offen sc1" % (vT2, sr(sWS, 4), sT0))
        a("buffer_load_dword v42, v%d, %s, s%d offen sc1" % (vZ, sr(sWS, 4), sT1))
        a("s_add_u32 s%d, s%d, 1" % (sSPIN, sSPIN))
        a.wait_vm_all()
        a("v_and_b32 v41, 15, v41")
        a("v_xor_b32 v41, 8, v41")
        a("v_xor_b32 v42, s%d, v42" % sTAG)
        a("v_or_b32 v41, v41, v42")
        a("v_cmp_ne_u32 vcc, 0, v41")
        a("s_cbranch_vccz %s_ok" % lbl)
        a("s_sleep 2")
        a("s_cmp_lt_u32 s%d, %d" % (sSPIN, SPIN_MAX))
        a("s_cbranch_scc1 %s" % lbl)
        a.label(lbl + "_ok")
        a("s_mov_b64 exec, -1")

    a("s_and_b32 s%d, s2, 7" % sR0)
    a("s_lshr_b32 s%d, s2, 3" % sR1)
    a("v_lshrrev_b32 v%d, 7, v0" % vT0)
    a("v_and_b32 v%d, 127, v0" % vT1)
    a("v_lshlrev_b32 v28, 12, v%d" % vT0)
    a("v_lshl_add_u32 v28, v%d, 4, v28" % vT1)
    a("v_bfe_u32 v%d, v%d, 4, 1" % (vT3, vT1))
    a("v_lshlrev_b32 v29, 6, v%d" % vT0)
    a("v_lshl_add_u32 v29, v%d, 4, v29" % vT3)
    a("v_mul_u32_u24 v30, %d, v%d" % (O_ACT_PITCH, vT0))
    a("v_lshl_add_u32 v30, v%d, 8, v30" % vT3)
    a("v_lshrrev_b32 v%d, 5, v%d" % (vT2, vT1))
    a("v_lshl_add_u32 v30, v%d, 6, v30" % vT2)
    a("v_and_b32 v%d, 1, v%d" % (vT2, vT1))
    a("v_lshl_add_u32 v30, v%d, 5, v30" % vT2)
    a("v_bfe_u32 v%d, v%d, 1, 3" % (vT2, vT1))
    a("v_lshl_add_u32 v30, v%d, 1, v30" % vT2)
    a("s_lshl_b32 s%d, s%d, 16" % (sQD, sR0))
    a("s_add_u32 s%d, s%d, 0x%x" % (sQD, sQD, WS_PART))
    a("s_add_u32 s%d, s%d, 0x8000" % (sQD + 1, sQD))
    a("s_lshl_b32 s%d, s%d, 10" % (sQD + 2, sR0))
    a("s_add_u32 s%d, s%d, 0x%x" % (sQD + 2, sQD + 2, WS_STAT))
    a("s_cmp_lg_u32 s%d, 0" % sW)
    a("s_cbranch_scc1 L_o_b5")
    a("s_mov_b32 s%d, 0x%x" % (sT1, WS_Z))
    a("s_mov_b32 s%d, 0" % sSPIN)
    a.label("L_e1")
    a("buffer_load_dwordx4 %s, v%d, %s, s%d offen sc1" % (vr(16, 4), vVO, sr(sWS, 4), sQD + 2))
    a("buffer_load_dword v20, v%d, %s, s%d offen sc1" % (vZ, sr(sWS, 4), sT1))
    a("s_add_u32 s%d, s%d, 1" % (sSPIN, sSPIN))
    a.wait_vm_all()
    a("v_xor_b32 v17, s%d, v17" % sTAG)
    a("v_xor_b32 v19, s%d, v19" % sTAG)
    a("v_xor_b32 v20, s%d, v20" % sTAG)
    a("v_or3_b32 v17, v17, v19, v20")
    a("v_cmp_ne_u32 vcc, 0, v17")
    a("s_cbranch_vccz L_o_b5")
    a("s_sleep 1")
    a("s_cmp_lt_u32 s%d, %d" % (sSPIN, SPIN_MAX))
    a("s_cbranch_scc1 L_e1")
    a.label("L_o_b5")
    a("s_barrier")
    stamp(a, 5)
    a("s_mov_b32 s%d, 0" % sSPIN)
    a.label("L_o_ld")
    for hk in range(2):
        r = 32 + 16 * hk
        a("buffer_load_dwordx4 %s, v28, %s, s%d offen sc1" % (vr(r, 4), sr(sWS, 4), sQD + hk))
        a("buffer_load_dwordx4 %s, v28, %s, s%d offen offset:2048 sc1" % (vr(r + 4, 4), sr(sWS, 4), sQD + hk))
        a("buffer_load_dwordx4 %s, v29, %s, s%d offen offset:%d sc1" % (vr(r + 8, 4), sr(sWS, 4), sQD + 2, hk * 512))
        a("buffer_load_dwordx4 %s, v29, %s, s%d offen offset:%d sc1" % (vr(r + 12, 4), sr(sWS, 4), sQD + 2, hk * 512 + 32))
    a("s_add_u32 s%d, s%d, 1" % (sSPIN, sSPIN))
    a.wait_vm_all()
    for j in range(16):
        a("v_xor_b32 v%d, s%d, v%d" % (33 + 2 * j, sTAG, 33 + 2 * j))
    a("v_or_b32 v33, v33, v35")
    for j in range(2, 16, 2):
        a("v_or3_b32 v33, v33, v%d, v%d" % (33 + 2 * j, 35 + 2 * j))
    a("v_cmp_ne_u32 vcc, 0, v33")
    a("s_cbranch_vccz L_o_ld_ok")
    a("s_cmp_lt_u32 s%d, %d" % (sSPIN, SPIN_MAX))
    a("s_cbranch_scc1 L_o_ld")
    a.label("L_o_ld_ok")
    for hk in range(2):
        r = 32 + 16 * hk
        o00, o01, o10, o11, m0_, l0, m1, l1 = r, r + 2, r + 4, r + 6, r + 8, r + 10, r + 12, r + 14
        M, e0, e1, den, n0, n1 = [16 + 6 * hk + i for i in range(6)]
        a("v_max_f32 v%d, v%d, v%d" % (M, m0_, m1))
        a("v_sub_f32 v%d, v%d, v%d" % (e0, m0_, M))
        a("v_sub_f32 v%d, v%d, v%d" % (e1, m1, M))
        a("v_mul_f32 v%d, 0x%08x, v%d" % (e0, LOG2E, e0))
        a("v_mul_f32 v%d, 0x%08x, v%d" % (e1, LOG2E, e1))
        a("v_exp_f32 v%d, v%d" % (e0, e0))
        a("v_exp_f32 v%d, v%d" % (e1, e1))
        a("v_mul_f32 v%d, v%d, v%d" % (den, e0, l0))
        a("v_fmac_f32 v%d, v%d, v%d" % (den, e1, l1))
        a("v_rcp_f32 v%d, v%d" % (den, den))
        a("v_mul_f32 v%d, v%d, v%d" % (n0, e0, o00))
        a("v_fmac_f32 v%d, v%d, v%d" % (n0, e1, o10))
        a("v_mul_f32 v%d, v%d, v%d" % (n1, e0, o01))
        a("v_fmac_f32 v%d, v%d, v%d" % (n1, e1, o11))
        a("v_mul_f32 v%d, v%d, v%d" % (n0, n0, den))
        a("v_mul_f32 v%d, v%d, v%d" % (n1, n1, den))
        a("v_cvt_pk_bf16_f32 v%d, v%d, v%d" % (n0, n0, n1))
        a("ds_write_b16 v30, v%d offset:%d" % (n0, L_ACT + hk * 512))
        a("ds_write_b16_d16_hi v30, v%d offset:%d" % (n0, L_ACT + hk * 512 + 16))
    frag_addrs(a, vT0, vT2, O_ACT_PITCH, 7)
    a("s_lshr_b32 s%d, s%d, 2" % (sT0, sW))
    a("s_lshl_b32 s%d, s%d, 8" % (sT1, sT0))
    a("v_add_u32 v%d, s%d, v%d" % (vT0, sT1, vT0))
    a("s_lshl_b32 s%d, s%d, 14" % (sT0, sT0))
    a("s_and_b32 s%d, s%d, 3" % (sT1, sW))
    a("s_lshl_b32 s%d, s%d, 5" % (sT1, sT1))
    a("s_add_u32 s%d, s%d, s%d" % (sT0, sT0, sT1))
    a("s_add_u32 s%d, s%d, %d" % (sT0, sT0, L_W))
    a("v_add_u32 v%d, s%d, v%d" % (vT2, sT0, vT2))
    A0, B0, C = 64, 80, 96
    for s_ in range(4):
        a("ds_read_b64_tr_b16 %s, v%d offset:%d" % (vr(B0 + 4 * s_, 2), vT2, s_ * 4096))
        a("ds_read_b64_tr_b16 %s, v%d offset:%d" % (vr(B0 + 4 * s_ + 2, 2), vT2, s_ * 4096 + 512))
    a.wait_lg_all()
    a("s_barrier")
    tg = [a("ds_read_b128 %s, v%d offset:%d" % (vr(A0 + 4 * s_, 4), vT0, L_ACT + s_ * 64)) for s_ in range(4)]
    a("v_lshlrev_b32 v31, 10, v%d" % vT1)
    a("v_and_b32 v%d, 15, v%d" % (vT2, vL))
    a("v_lshl_add_u32 v31, v%d, 2, v31" % vT2)
    a("s_lshr_b32 s%d, s%d, 2" % (sT0, sW))
    a("s_lshl_b32 s%d, s%d, 11" % (sT0, sT0))
    a("s_and_b32 s%d, s%d, 3" % (sT1, sW))
    a("s_lshl_b32 s%d, s%d, 6" % (sT1, sT1))
    a("s_add_u32 s%d, s%d, s%d" % (sT0, sT0, sT1))
    a("v_add_u32 v31, s%d, v31" % sT0)
    for s_ in range(4):
        a.wait_lg(tg[s_])
        a("v_mfma_f32_16x16x32_bf16 %s, %s, %s, %s" % (vr(C, 4), vr(A0 + 4 * s_, 4), vr(B0 + 4 * s_, 4), "0" if s_ == 0 else vr(C, 4)))
    set_exec(a, 0xffffffff)
    for j in range(4):
        a("ds_write_b32 v31, v%d offset:%d" % (C + j, L_RED + j * 256))
    a("s_mov_b64 exec, -1")
    a.wait_lg_all()
    a("s_barrier")
    a("s_cmp_ge_u32 s%d, 8" % sW)
    a("s_cbranch_scc1 L_d_dma")
    a("v_lshlrev_b32 v%d, 2, v0" % vT0)
    for h in range(4):
        a("ds_read_b32 v%d, v%d offset:%d" % (16 + h, vT0, L_RED + h * 2048))
    a("s_mul_i32 s%d, s%d, 4608" % (sT0, sW))
    a("s_lshl_b32 s%d, s%d, 9" % (sT1, sR1))
    a("s_add_u32 s%d, s%d, s%d" % (sT0, sT0, sT1))
    a("s_add_u32 s%d, s%d, 0x%x" % (sT0, sT0, WS_ACC1))
    a("v_lshlrev_b32 v%d, 3, v%d" % (vT1, vL))
    a.wait_lg_all()
    a("v_add_f32 v16, v16, v17")
    a("v_add_f32 v18, v18, v19")
    a("v_add_f32 v16, v16, v18")
    a("v_floor_f32 v17, v16")
    a("v_sub_f32 v16, v16, v17")
    a("v_cvt_i32_f32 v21, v17")
    a("v_mul_f32 v16, 0x4f800000, v16")
    a("v_cvt_u32_f32 v16, v16")
    a("v_and_or_b32 v20, v16, -16, 1")
    a("buffer_atomic_add_x2 v[20:21], v%d, %s, s%d offen sc1" % (vT1, sr(sWS, 4), sT0))
    stamp(a, 1)
    a.label("L_d_dma")
    a("s_cmp_ge_u32 s%d, 12" % sW)
    a("s_cbranch_scc1 L_d_nodma")
    a("s_mul_i32 s%d, s%d, %d" % (sT0, sR0, 576 * 1152))
    a("s_lshl_b32 s%d, s%d, 7" % (sT1, sR1))
    a("s_add_u32 s%d, s%d, s%d" % (sT0, sT0, sT1))
    srd(a, sB_, P_WD, 575 * 1152 + 128, "s%d" % sT0)
    a("s_mul_i32 s%d, s%d, 48" % (sT2, sW))
    dma_tile(a, 6, 3, 1152, sT2, str(L_W), sB_)
    a.label("L_d_nodma")
    a("s_cmp_lg_u32 s%d, 15" % sW)
    a("s_cbranch_scc1 L_d_b8")
    acc_prepoll("L_dpre")
    a.label("L_d_b8")
    a.wait_vm_all()
    a("s_barrier")
    a("s_cmp_ge_u32 s%d, 9" % sW)
    a("s_cbranch_scc1 L_d_b9")
    a("v_and_b32 v%d, 7, v%d" % (vT0, vL))
    a("v_mul_u32_u24 v%d, 9216, v%d" % (vT0, vT0))
    a("v_lshrrev_b32 v%d, 4, v%d" % (vT1, vL))
    a("v_lshl_add_u32 v%d, v%d, 4, v%d" % (vT0, vT1, vT0))
    a("s_mul_i32 s%d, s%d, 1152" % (sT0, sR0))
    a("s_lshl_b32 s%d, s%d, 7" % (sT1, sW))
    a("s_add_u32 s%d, s%d, s%d" % (sT0, sT0, sT1))
    a("s_add_u32 s%d, s%d, 0x%x" % (sT0, sT0, WS_T))
    a("v_bfe_u32 v%d, v%d, 2, 2" % (vT2, vL))
    a("v_lshl_add_u32 v%d, v%d, 3, v%d" % (vT2, vT1, vT2))
    a("v_lshlrev_b32 v%d, 7, v%d" % (vT2, vT2))
    a("v_and_b32 v%d, 3, v%d" % (vT3, vL))
    a("v_lshl_add_u32 v%d, v%d, 3, v%d" % (vT2, vT3, vT2))
    a("s_lshl_b32 s%d, s%d, 13" % (sT1, sW))
    a("s_add_u32 s%d, s%d, %d" % (sT1, sT1, L_W))
    a("v_add_u32 v%d, s%d, v%d" % (vT2, sT1, vT2))
    A0, B0, C = 8, 16, 48
    for s_ in range(2):
        for ct in range(4):
            r = B0 + 4 * (s_ * 4 + ct)
            a("ds_read_b64_tr_b16 %s, v%d offset:%d" % (vr(r, 2), vT2, s_ * 4096 + ct * 32))
            a("ds_read_b64_tr_b16 %s, v%d offset:%d" % (vr(r + 2, 2), vT2, s_ * 4096 + ct * 32 + 512))
    a("v_lshlrev_b32 v65, 10, v%d" % vT1)
    a("v_and_b32 v%d, 15, v%d" % (vT2, vL))
    a("v_lshl_add_u32 v65, v%d, 2, v65" % vT2)
    a("s_lshl_b32 s%d, s%d, 11" % (sT1, sW))
    a("v_add_u32 v65, s%d, v65" % sT1)
    a("s_mov_b32 s%d, 0" % sSPIN)
    a.label("L_d_poll")
    a("buffer_load_dwordx4 %s, v%d, %s, s%d offen sc1" % (vr(A0, 4), vT0, sr(sWS, 4), sT0))
    a("buffer_load_dwordx4 %s, v%d, %s, s%d offen offset:64 sc1" % (vr(A0 + 4, 4), vT0, sr(sWS, 4), sT0))
    a("s_add_u32 s%d, s%d, 1" % (sSPIN, sSPIN))
    a.wait_vm_all()
    a("v_max_u32 v64, v8, v9")
    a("v_max3_u32 v64, v64, v10, v11")
    a("v_max3_u32 v64, v64, v12, v13")
    a("v_max3_u32 v64, v64, v14, v15")
    a("v_cmp_eq_u32 vcc, -1, v64")
    a("s_cbranch_vccz L_d_ok")
    a("s_cmp_lt_u32 s%d, %d" % (sSPIN, SPIN_MAX))
    a("s_cbranch_scc1 L_d_poll")
    a.label("L_d_ok")
    stamp(a, 6)
    a.wait_lg_all()
    for s_ in range(2):
        for ct in range(4):
            a("v_mfma_f32_16x16x32_bf16 %s, %s, %s, %s" % (vr(C + 4 * ct, 4), vr(A0 + 4 * s_, 4), vr(B0 + 4 * (s_ * 4 + ct), 4), "0" if s_ == 0 else vr(C + 4 * ct, 4)))
    set_exec(a, 0xffffffff)
    for ct in range(4):
        for j in range(4):
            a("ds_write_b32 v65, v%d offset:%d" % (C + 4 * ct + j, L_RED + j * 256 + ct * 64))
    a("s_mov_b64 exec, -1")
    a.wait_lg_all()
    a.label("L_d_b9")
    a("s_barrier")
    a("s_cmp_ge_u32 s%d, 8" % sW)
    a("s_cbranch_scc1 L_d_final")
    a("v_lshlrev_b32 v%d, 2, v0" % vT0)
    tg = [a("ds_read_b32 v%d, v%d offset:%d" % (8 + w, vT0, L_RED + w * 2048)) for w in range(9)]
    a("s_lshl_b32 s%d, s%d, 3" % (sT0, sR0))
    a("s_add_u32 s%d, s%d, s%d" % (sT0, sT0, sW))
    a("s_mul_i32 s%d, s%d, 2304" % (sT0, sT0))
    a("s_lshl_b32 s%d, s%d, 8" % (sT1, sR1))
    a("s_add_u32 s%d, s%d, s%d" % (sT0, sT0, sT1))
    a("s_add_u32 s%d, s%d, 0x%x" % (sT0, sT0, WS_P))
    a("v_lshlrev_b32 v%d, 2, v%d" % (vT1, vL))
    for w in range(1, 9):
        a.wait_lg(tg[w])
        a("v_add_f32 v8, v8, v%d" % (8 + w))
    a("buffer_store_dword v8, v%d, %s, s%d offen sc1" % (vT1, sr(sWS, 4), sT0))
    stamp(a, 2)
    a("s_branch L_fin")
    a.label("L_d_final")
    a("s_cmp_lg_u32 s%d, 9" % sW)
    a("s_cbranch_scc1 L_fin")
    a("v_lshrrev_b32 v%d, 3, v%d" % (vT0, vL))
    a("v_mul_u32_u24 v%d, 576, v%d" % (vT0, vT0))
    a("v_and_b32 v%d, 7, v%d" % (vT1, vL))
    a("v_add_u32 v%d, v%d, v%d" % (vT0, vT0, vT1))
    a("s_lshl_b32 s%d, s%d, 6" % (sT0, sR1))
    a("s_lshl_b32 s%d, s%d, 3" % (sT1, sR0))
    a("s_add_u32 s%d, s%d, s%d" % (sT0, sT0, sT1))
    a("v_add_u32 v%d, s%d, v%d" % (vT0, sT0, vT0))
    a("v_lshlrev_b32 v%d, 1, v%d" % (vT1, vT0))
    a("v_lshlrev_b32 v%d, 3, v%d" % (vT2, vT0))
    a("v_lshlrev_b32 v%d, 2, v%d" % (vT0, vT0))
    srd(a, sA, P_X, 9216)
    srd(a, sB_, P_OUT, 9216)
    a("buffer_load_ushort v20, v%d, %s, 0 offen" % (vT1, sr(sA, 4)))
    a("s_mov_b32 s%d, 0x%x" % (sT0, WS_ACC1))
    a("buffer_load_dwordx2 v[22:23], v%d, %s, s%d offen sc1" % (vT2, sr(sWS, 4), sT0))
    for k in range(8):
        a("s_mov_b32 s%d, 0x%x" % (sQD + k, WS_P + k * 18432))
    a("s_mov_b32 s%d, 0" % sSPIN)
    a.label("L_f_poll")
    for k in range(8):
        a("buffer_load_dword v%d, v%d, %s, s%d offen sc1" % (8 + k, vT0, sr(sWS, 4), sQD + k))
    a("s_add_u32 s%d, s%d, 1" % (sSPIN, sSPIN))
    a.wait_vm_all()
    a("v_max_u32 v16, v8, v9")
    a("v_max3_u32 v16, v16, v10, v11")
    a("v_max3_u32 v16, v16, v12, v13")
    a("v_max3_u32 v16, v16, v14, v15")
    a("v_cmp_eq_u32 vcc, -1, v16")
    a("s_cbranch_vccz L_f_ok")
    a("s_cmp_lt_u32 s%d, %d" % (sSPIN, SPIN_MAX))
    a("s_cbranch_scc1 L_f_poll")
    a.label("L_f_ok")
    for k in range(1, 8):
        a("v_add_f32 v8, v8, v%d" % (8 + k))
    bf16r(a, 8, 8)
    a("v_lshlrev_b32 v20, 16, v20")
    fix2f(a, 21, 22, 23)
    bf16r(a, 21, 21)
    a("v_add_f32 v20, v20, v21")
    bf16r(a, 20, 20)
    a("v_add_f32 v20, v20, v8")
    a("v_cvt_pk_bf16_f32 v20, v20, v20")
    a("buffer_store_short v20, v%d, %s, 0 offen" % (vT1, sr(sB_, 4)))
    a("s_cmp_lg_u32 s2, 0")
    a("s_cbranch_scc1 L_fin")
    a("v_mov_b32 v%d, s%d" % (vT2, sEPO))
    a("s_mov_b32 s%d, 0x%x" % (sT0, WS_EPOCH))
    a("s_mov_b64 exec, 1")
    a("buffer_store_dword v%d, v%d, %s, s%d offen sc1" % (vT2, vZ, sr(sWS, 4), sT0))
    a("s_mov_b64 exec, -1")
    a("s_branch L_fin")

    a.label("L_GU")
    a("s_sub_u32 s%d, s2, 72" % sR0)
    a("s_cmp_lt_u32 s%d, 4" % sW)
    a("s_cbranch_scc1 L_g_nodma")
    a("s_lshl_b32 s%d, s%d, 6" % (sT2, sR0))
    a("s_cmp_ge_u32 s%d, 10" % sW)
    a("s_cselect_b32 s%d, s%d, s%d" % (sT0, P_WU, P_WG))
    a("s_cselect_b32 s%d, s%d, s%d" % (sT1, P_WU + 1, P_WG + 1))
    a("s_cselect_b32 s%d, 10, 4" % sT3)
    a("s_cselect_b32 s%d, %d, 0" % (sR1, 36864))
    a("s_add_u32 s%d, s%d, s%d" % (sB_, sT0, sT2))
    a("s_addc_u32 s%d, s%d, 0" % (sB_ + 1, sT1))
    a("s_mov_b32 s%d, %d" % (sB_ + 2, 575 * 9216 + 64))
    a("s_mov_b32 s%d, 0x00020000" % (sB_ + 3))
    a("s_sub_u32 s%d, s%d, s%d" % (sT2, sW, sT3))
    a("s_mul_i32 s%d, s%d, 96" % (sT2, sT2))
    a("s_add_u32 s%d, s%d, %d" % (sR1, sR1, L_W))
    dma_tile(a, 6, 2, 9216, sT2, "s%d" % sR1, sB_)
    a.label("L_g_nodma")
    xs = list(range(8, 17))
    a("s_cmp_ge_u32 s%d, 8" % sW)
    a("s_cbranch_scc1 L_g_b8")
    a("s_mul_i32 s%d, s%d, 1152" % (sT0, sW))
    srd(a, sA, P_X, 1152, "s%d" % sT0)
    a("v_lshlrev_b32 v%d, 1, v%d" % (vT0, vL))
    for e in range(9):
        a("buffer_load_ushort v%d, v%d, %s, 0 offen offset:%d" % (xs[e], vT0, sr(sA, 4), e * 128))
    a("s_cmp_lg_u32 s%d, 1" % sW)
    a("s_cbranch_scc1 L_g_b8")
    acc_prepoll("L_gpre")
    a.label("L_g_b8")
    a("s_barrier")
    stamp(a, 5)
    a("s_cmp_ge_u32 s%d, 8" % sW)
    a("s_cbranch_scc1 L_g_b9")
    a("s_mul_i32 s%d, s%d, 4608" % (sT0, sW))
    a("s_add_u32 s%d, s%d, 0x%x" % (sT0, sT0, WS_ACC1))
    a("s_add_u32 s%d, s%d, 4096" % (sT1, sT0))
    a("v_lshlrev_b32 v%d, 3, v%d" % (vT1, vL))
    a("s_mul_i32 s%d, s%d, %d" % (sT2, sW, ACT_PITCH))
    a("v_add_u32 v%d, s%d, v%d" % (vT0, sT2, vT0))
    aa = 32
    a("s_mov_b32 s%d, 0" % sSPIN)
    a.label("L_g_ld")
    for e in range(9):
        a("buffer_load_dwordx2 %s, v%d, %s, s%d offen offset:%d sc1" % (vr(aa + 2 * e, 2), vT1, sr(sWS, 4), sT0 if e < 8 else sT1, (e & 7) * 512))
    a("s_add_u32 s%d, s%d, 1" % (sSPIN, sSPIN))
    a.wait_vm_all()
    a("v_and_b32 v50, v32, v34")
    a("v_or_b32 v51, v32, v34")
    for e in range(2, 9):
        a("v_and_b32 v50, v50, v%d" % (aa + 2 * e))
        a("v_or_b32 v51, v51, v%d" % (aa + 2 * e))
    a("v_and_b32 v50, 8, v50")
    a("v_and_or_b32 v50, v51, 7, v50")
    a("v_cmp_ne_u32 vcc, 8, v50")
    a("s_cbranch_vccz L_g_ld_ok")
    a("s_cmp_lt_u32 s%d, %d" % (sSPIN, SPIN_MAX))
    a("s_cbranch_scc1 L_g_ld")
    a.label("L_g_ld_ok")
    stamp(a, 6)
    for e in range(9):
        fix2f(a, aa + 2 * e + 1, aa + 2 * e, aa + 2 * e + 1)
        a("v_lshlrev_b32 v%d, 16, v%d" % (xs[e], xs[e]))
        bf16r(a, aa + 2 * e + 1, aa + 2 * e + 1)
        a("v_add_f32 v%d, v%d, v%d" % (xs[e], xs[e], aa + 2 * e + 1))
        bf16r(a, xs[e], xs[e])
    layernorm9(a, xs, 26)
    for e in range(9):
        a("v_cvt_pk_bf16_f32 v%d, v%d, v%d" % (xs[e], xs[e], xs[e]))
        a("ds_write_b16 v%d, v%d offset:%d" % (vT0, xs[e], L_ACT + e * 128))
    a.label("L_g_b9")
    frag_addrs(a, vT0, vT2, ACT_PITCH, 6)
    a("s_lshr_b32 s%d, s%d, 2" % (sT0, sW))
    a("s_mul_i32 s%d, s%d, 384" % (sT1, sT0))
    a("v_add_u32 v%d, s%d, v%d" % (vT0, sT1, vT0))
    a("s_mul_i32 s%d, s%d, %d" % (sT0, sT0, 192 * 64))
    a("s_and_b32 s%d, s%d, 1" % (sT1, sW))
    a("s_lshl_b32 s%d, s%d, 5" % (sT1, sT1))
    a("s_add_u32 s%d, s%d, s%d" % (sT0, sT0, sT1))
    a("s_bitcmp1_b32 s%d, 1" % sW)
    a("s_cselect_b32 s%d, %d, 0" % (sT1, 36864))
    a("s_add_u32 s%d, s%d, s%d" % (sT0, sT0, sT1))
    a("s_add_u32 s%d, s%d, %d" % (sT0, sT0, L_W))
    a("v_add_u32 v%d, s%d, v%d" % (vT2, sT0, vT2))
    a("v_lshlrev_b32 v60, 8, v%d" % vT1)
    a("v_and_b32 v%d, 15, v%d" % (vT3, vL))
    a("v_lshl_add_u32 v60, v%d, 2, v60" % vT3)
    a("s_lshl_b32 s%d, s%d, 9" % (sT0, sW))
    a("v_add_u32 v60, s%d, v60" % sT0)
    a.wait_all()
    a("s_barrier")
    a("s_cmp_ge_u32 s%d, 12" % sW)
    a("s_cbranch_scc1 L_g_b10")
    A0, B0, C = 8, 32, 56
    tg = []
    for s_ in range(6):
        a("ds_read_b128 %s, v%d offset:%d" % (vr(A0 + 4 * s_, 4), vT0, L_ACT + s_ * 64))
        a("ds_read_b64_tr_b16 %s, v%d offset:%d" % (vr(B0 + 4 * s_, 2), vT2, s_ * 2048))
        tg.append(a("ds_read_b64_tr_b16 %s, v%d offset:%d" % (vr(B0 + 4 * s_ + 2, 2), vT2, s_ * 2048 + 256)))
    for s_ in range(6):
        a.wait_lg(tg[s_])
        a("v_mfma_f32_16x16x32_bf16 %s, %s, %s, %s" % (vr(C, 4), vr(A0 + 4 * s_, 4), vr(B0 + 4 * s_, 4), "0" if s_ == 0 else vr(C, 4)))
    set_exec(a, 0xffffffff)
    for j in range(4):
        a("ds_write_b32 v60, v%d offset:%d" % (C + j, L_RED + j * 64))
    a("s_mov_b64 exec, -1")
    a.wait_lg_all()
    a.label("L_g_b10")
    a("s_barrier")
    a("s_cmp_ge_u32 s%d, 2" % sW)
    a("s_cbranch_scc1 L_fin")
    a("v_lshrrev_b32 v%d, 4, v0" % vT0)
    a("v_bfe_u32 v%d, v0, 3, 1" % vT1)
    a("v_lshlrev_b32 v%d, 9, v%d" % (vT1, vT1))
    a("v_lshl_add_u32 v%d, v%d, 6, v%d" % (vT1, vT0, vT1))
    a("v_and_b32 v%d, 7, v0" % vT2)
    a("v_lshl_add_u32 v%d, v%d, 3, v%d" % (vT1, vT2, vT1))
    for kp in range(3):
        a("ds_read_b64 %s, v%d offset:%d" % (vr(8 + 2 * kp, 2), vT1, L_RED + kp * 2048))
        a("ds_read_b64 %s, v%d offset:%d" % (vr(14 + 2 * kp, 2), vT1, L_RED + kp * 2048 + 1024))
    a("v_mul_u32_u24 v%d, 9216, v%d" % (vT0, vT0))
    a("v_and_b32 v%d, 15, v0" % vT2)
    a("v_lshl_add_u32 v%d, v%d, 2, v%d" % (vT0, vT2, vT0))
    a("s_lshl_b32 s%d, s%d, 6" % (sT0, sR0))
    a("s_add_u32 s%d, s%d, 0x%x" % (sT0, sT0, WS_T))
    a.wait_lg_all()
    for c in range(2):
        G, U = 8 + c, 14 + c
        a("v_add_f32 v%d, v%d, v%d" % (G, G, G + 2))
        a("v_add_f32 v%d, v%d, v%d" % (G, G, G + 4))
        a("v_add_f32 v%d, v%d, v%d" % (U, U, U + 2))
        a("v_add_f32 v%d, v%d, v%d" % (U, U, U + 4))
        bf16r(a, G, G)
        bf16r(a, U, U)
        gelu(a, G, 20 + 2 * c, 21 + 2 * c)
        bf16r(a, G, G)
        a("v_mul_f32 v%d, v%d, v%d" % (G, G, U))
    a("v_cvt_pk_bf16_f32 v8, v8, v9")
    a("buffer_store_dword v8, v%d, %s, s%d offen sc1" % (vT0, sr(sWS, 4), sT0))
    a.label("L_fin")
    if OPT["stamp"]:
        stamp(a, 7)
        a("s_waitcnt lgkmcnt(0)")
        for i in range(NSTAMP):
            a("v_writelane_b32 v126, s%d, %d" % (sST + 2 * i, i))
        a("s_getreg_b32 s%d, hwreg(HW_REG_XCC_ID)" % sT0)
        a("v_writelane_b32 v126, s%d, 15" % sT0)
        a("v_lshlrev_b32 v127, 2, v%d" % vL)
        a("s_lshl_b32 s%d, s2, 4" % sT0)
        a("s_add_u32 s%d, s%d, s%d" % (sT0, sT0, sW))
        a("s_lshl_b32 s%d, s%d, 6" % (sT0, sT0))
        a("s_add_u32 s%d, s%d, 0x%x" % (sT0, sT0, WS_STAMP))
        a("s_mov_b64 exec, 0xffff")
        a("buffer_store_dword v126, v127, %s, s%d offen" % (sr(sWS, 4), sT0))
    a.label("L_end")
    a("s_endpgm")
    nv = max(128, (a.maxv + 8) // 8 * 8)
    a.raw(""".section .rodata,"a"
.p2align 6
.amdhsa_kernel %s
  .amdhsa_next_free_vgpr %d
  .amdhsa_next_free_sgpr %d
  .amdhsa_accum_offset %d
  .amdhsa_group_segment_fixed_size 0
  .amdhsa_kernarg_size 96
  .amdhsa_user_sgpr_count 2
  .amdhsa_user_sgpr_kernarg_segment_ptr 1
  .amdhsa_system_sgpr_workgroup_id_x 1
  .amdhsa_float_denorm_mode_32 3
.end_amdhsa_kernel
""" % (name, nv, a.maxs + 1, nv))
    hdr = open("cdna_kernels/%s.s.ref" % NAME).read().split("; @launch")[0]
    hdr += "; @launch grid=(256,1,1) block=(1024,1,1) lds=%d\n" % LDS_BYTES
    hdr += '.amdgcn_target "amdgcn-amd-amdhsa--gfx950"\n.text\n'
    return hdr + a.text()


if __name__ == "__main__":
    args = sys.argv[1:]
    for k in list(args):
        if k.startswith("--"):
            kv = k[2:].split("=")
            OPT[kv[0]] = int(kv[1]) if len(kv) > 1 else 1
            args.remove(k)
    out = args[0] if args else "cdna_kernels/%s.s" % NAME
    open(out, "w").write(gen())
```

```python
import sys, struct, math
from asmlib import Asm, vr, sr

NAME = "sequential_preLN__gqa_block_cached__geglu_ffn__decode"
KNAME = NAME + "_kernel"

LOG2E = 0x3FB8AA3B
SCALE = 0x3DB504F3
INV576 = struct.unpack("<I", struct.pack("<f", 1.0 / 576.0))[0]
EPS = struct.unpack("<I", struct.pack("<f", 1e-5))[0]

WS_Q = 0x0
WS_PART = 0x20000
WS_STAT = 0xA0000
WS_Z = 0xA2000
WS_EPOCH = 0xA2800
WS_CNT = 0xA4000
WS_ACC1 = 0xB0000
WS_ACC2 = 0xB9000
WS_T = 0xD0000
WS_SIZE = 0x200000
WS_STAMP = 0x100000

P_X, P_K, P_V, P_WQ, P_WO, P_BX, P_WG, P_WU, P_WD, P_OUT, P_DBG, P_WS = [4 + 2 * i for i in range(12)]
DPP = " row_mask:0xf bank_mask:0xf"

L_CNT = 0
L_ML = 64
L_QS = 512
L_ACT = 1024
ACT_PITCH = 1168
O_ACT_PITCH = 1040
L_RED = 10368
L_W = 28800
LDS_BYTES = L_W + 73728

SPIN_MAX = 100000
OPT = dict(stamp=0, win=12, pw=4, noqwait=0, nocomp=0, wb=8, wq=22, othr=56, gthr=6)


def f32(x):
    return "0x%08x" % struct.unpack("<I", struct.pack("<f", x))[0]


def set_exec(a, m):
    a("s_mov_b32 exec_lo, 0x%x" % (m & 0xffffffff))
    a("s_mov_b32 exec_hi, 0x%x" % (m >> 32))


def srd(a, d, ptr, nbytes, off=None):
    if off is None:
        a("s_mov_b32 s%d, s%d" % (d, ptr))
        a("s_mov_b32 s%d, s%d" % (d + 1, ptr + 1))
    else:
        a("s_add_u32 s%d, s%d, %s" % (d, ptr, off))
        a("s_addc_u32 s%d, s%d, 0" % (d + 1, ptr + 1))
    a("s_mov_b32 s%d, %s" % (d + 2, nbytes if isinstance(nbytes, str) else "0x%x" % nbytes))
    a("s_mov_b32 s%d, 0x00020000" % (d + 3))


def allreduce(a, v, t, op="add", lo=True, hi=True):
    ins = "v_%s_f32" % op
    if lo:
        for m in ("quad_perm:[1,0,3,2]", "quad_perm:[2,3,0,1]", "row_half_mirror", "row_mirror"):
            a("%s_dpp v%d, v%d, v%d %s%s" % (ins, v, v, v, m, DPP))
    if hi:
        for sw in ("v_permlane16_swap_b32", "v_permlane32_swap_b32"):
            a("v_mov_b32 v%d, v%d" % (t, v))
            a("%s v%d, v%d" % (sw, v, t))
            a("%s v%d, v%d, v%d" % (ins, v, v, t))


def bf16r(a, d, s):
    a("v_cvt_pk_bf16_f32 v%d, v%d, v%d" % (d, s, s))
    a("v_lshlrev_b32 v%d, 16, v%d" % (d, d))


def layernorm9(a, xs, t0):
    s, t, mean, sd, rc, e = t0, t0 + 1, t0 + 2, t0 + 3, t0 + 4, t0 + 5
    a("v_add_f32 v%d, v%d, v%d" % (s, xs[0], xs[1]))
    for i in range(2, 9):
        a("v_add_f32 v%d, v%d, v%d" % (s, s, xs[i]))
    allreduce(a, s, t)
    a("v_mul_f32 v%d, 0x%08x, v%d" % (mean, INV576, s))
    a("v_sub_f32 v%d, v%d, v%d" % (t, xs[0], mean))
    a("v_mul_f32 v%d, v%d, v%d" % (s, t, t))
    for i in range(1, 9):
        a("v_sub_f32 v%d, v%d, v%d" % (t, xs[i], mean))
        a("v_fmac_f32 v%d, v%d, v%d" % (s, t, t))
    allreduce(a, s, t)
    a("v_mul_f32 v%d, 0x%08x, v%d" % (s, INV576, s))
    bf16r(a, s, s)
    a("v_add_f32 v%d, 0x%08x, v%d" % (s, EPS, s))
    bf16r(a, s, s)
    a("v_sqrt_f32 v%d, v%d" % (sd, s))
    bf16r(a, mean, mean)
    a("v_rcp_f32 v%d, v%d" % (rc, sd))
    a("v_fma_f32 v%d, -v%d, v%d, v%d" % (e, sd, sd, s))
    a("v_mul_f32 v%d, 0.5, v%d" % (rc, rc))
    a("v_fmac_f32 v%d, v%d, v%d" % (sd, e, rc))
    bf16r(a, sd, sd)
    a("v_rcp_f32 v%d, v%d" % (rc, sd))
    for i in range(9):
        a("v_sub_f32 v%d, v%d, v%d" % (xs[i], xs[i], mean))
        bf16r(a, xs[i], xs[i])
    for i in range(9):
        x = xs[i]
        a("v_mul_f32 v%d, v%d, v%d" % (t, x, rc))
        a("v_fma_f32 v%d, -v%d, v%d, v%d" % (e, t, sd, x))
        a("v_fma_f32 v%d, v%d, v%d, v%d" % (x, e, rc, t))


def gelu(a, x, y, t):
    c = -2.0 * math.sqrt(2.0 / math.pi) * 1.4426950408889634
    a("v_mul_f32 v%d, v%d, v%d" % (t, x, x))
    a("v_mul_f32 v%d, %s, v%d" % (t, f32(0.044715), t))
    a("v_fma_f32 v%d, v%d, v%d, v%d" % (y, t, x, x))
    a("v_mul_f32 v%d, %s, v%d" % (y, f32(c), y))
    a("v_exp_f32 v%d, v%d" % (y, y))
    a("v_add_f32 v%d, 1.0, v%d" % (y, y))
    a("v_rcp_f32 v%d, v%d" % (y, y))
    a("v_mul_f32 v%d, v%d, v%d" % (x, x, y))


def fix2f(a, d, lo, hi):
    a("v_and_b32 v%d, -16, v%d" % (lo, lo))
    a("v_cvt_f32_u32 v%d, v%d" % (lo, lo))
    a("v_cvt_f32_i32 v%d, v%d" % (d, hi))
    a("v_fmac_f32 v%d, 0x2f800000, v%d" % (d, lo))


sSPIN, sTAG = 1, 3
sK, sV, sWS, sA, sB_ = 28, 32, 36, 40, 44
sNU = 48
sGR = 50
sW, sHKV, sBB, sHALF, sLID = 52, 53, 54, 55, 56
sT0, sT1, sT2, sT3 = 57, 58, 59, 60
sCUR0, sCUR1, sNEW, sOFF = 61, 62, 63, 64
sHI, sL2E, sEPO = 65, 66, 67
sQD = 68
sR0, sR1 = 84, 85
sST = 86
NSTAMP = 8

vL, vKO, vVO, vT0, vT1, vT2, vT3 = 1, 2, 3, 4, 5, 6, 7
vM, vQ, vACC, vB, vC = 8, 12, 16, 20, 28
vMX, vLS, vNM, vIDX = 44, 45, 46, 47
vS = 48
vRING = 56
vZ, vONE = 120, 121


def stamp(a, i):
    if OPT["stamp"]:
        a.raw("    s_memrealtime s[%d:%d]" % (sST + 2 * i, sST + 1 + 2 * i))
        a.maxs = max(a.maxs, sST + 1 + 2 * i)


def dma_tile(a, nload, lanes_per_row_log2, row_stride, sRow0, lds_base, sd, nt=True):
    k = lanes_per_row_log2
    rows_per_load = 64 >> k
    a("v_lshrrev_b32 v%d, %d, v%d" % (vT0, k, vL))
    a("v_add_u32 v%d, s%d, v%d" % (vT0, sRow0, vT0))
    if row_stride == 8192:
        a("v_lshlrev_b32 v%d, 13, v%d" % (vT0, vT0))
    else:
        a("v_mul_u32_u24 v%d, %d, v%d" % (vT0, row_stride, vT0))
    a("v_and_b32 v%d, %d, v%d" % (vT1, (1 << k) - 1, vL))
    a("v_lshl_add_u32 v%d, v%d, 4, v%d" % (vT0, vT1, vT0))
    a("s_lshl_b32 s%d, s%d, %d" % (sT0, sRow0, 4 + k))
    a("s_add_u32 s%d, s%d, %s" % (sT0, sT0, lds_base))
    a("s_mov_b32 s%d, 0" % sT1)
    for i in range(nload):
        a("s_mov_b32 m0, s%d" % sT0)
        a("buffer_load_dwordx4 v%d, %s, s%d offen %slds" % (vT0, sr(sd, 4), sT1, "nt " if nt else ""))
        if i < nload - 1:
            a("s_add_u32 s%d, s%d, 1024" % (sT0, sT0))
            a("s_add_u32 s%d, s%d, %d" % (sT1, sT1, rows_per_load * row_stride))


def frag_addrs(a, vA, vBa, act_pitch, row_log2):
    a("v_and_b32 v%d, 7, v%d" % (vA, vL))
    a("v_mul_u32_u24 v%d, %d, v%d" % (vA, act_pitch, vA))
    a("v_lshrrev_b32 v%d, 4, v%d" % (vT1, vL))
    a("v_lshl_add_u32 v%d, v%d, 4, v%d" % (vA, vT1, vA))
    a("v_bfe_u32 v%d, v%d, 2, 2" % (vBa, vL))
    a("v_lshl_add_u32 v%d, v%d, 3, v%d" % (vBa, vT1, vBa))
    a("v_lshlrev_b32 v%d, %d, v%d" % (vBa, row_log2, vBa))
    a("v_and_b32 v%d, 3, v%d" % (vT3, vL))
    a("v_lshl_add_u32 v%d, v%d, 3, v%d" % (vBa, vT3, vBa))


def gen():
    a = Asm()
    name = KNAME
    a.raw(".globl %s\n.p2align 8\n.type %s,@function\n%s:" % (name, name, name))
    a("s_cmp_ge_u32 s2, 256")
    a("s_cbranch_scc1 L_end")
    a("s_load_dwordx16 s[4:19], s[0:1], 0")
    a("s_load_dwordx8 s[20:27], s[0:1], 64")
    if OPT["stamp"]:
        for i in range(NSTAMP):
            a("s_mov_b32 s%d, 0" % (sST + 2 * i))
    stamp(a, 0)
    a("v_and_b32 v%d, 63, v0" % vL)
    a("v_lshrrev_b32 v%d, 6, v0" % vT0)
    a("v_readfirstlane_b32 s%d, v%d" % (sW, vT0))
    a("s_lshr_b32 s%d, s2, 7" % sHALF)
    a("s_and_b32 s%d, s2, 127" % sT3)
    a("s_xor_b32 s%d, s%d, s%d" % (sT3, sT3, sHALF))
    a("s_and_b32 s%d, s%d, 15" % (sHKV, sT3))
    a("s_lshr_b32 s%d, s%d, 4" % (sBB, sT3))
    a("s_lshl_b32 s%d, s%d, 4" % (sLID, sHKV))
    a("s_lshl_b32 s%d, s%d, 1" % (sT0, sBB))
    a("s_add_u32 s%d, s%d, s%d" % (sLID, sLID, sT0))
    a("s_add_u32 s%d, s%d, s%d" % (sLID, sLID, sHALF))
    a("s_mov_b32 s%d, 0xffff0000" % sHI)
    a("s_mov_b32 s%d, 0x%08x" % (sL2E, LOG2E))
    a("s_mov_b32 s%d, s%d" % (sCUR0, sW))
    a("s_add_u32 s%d, s%d, 16" % (sCUR1, sW))
    def role_w(dst, src):
        a("s_cmp_lt_u32 s%d, 136" % src)
        a("s_cselect_b32 s%d, %d, 0" % (dst, OPT["wq"] // 2))
        a("s_cmp_lt_u32 s%d, 72" % src)
        a("s_cselect_b32 s%d, %d, s%d" % (dst, OPT["wb"] // 2, dst))
    a("s_xor_b32 s%d, s%d, 0x81" % (sT0, sT3))
    role_w(sT1, sT0)
    role_w(sT2, sT3)
    a("s_add_u32 s%d, s%d, 128" % (sT1, sT1))
    a("s_sub_u32 s%d, s%d, s%d" % (sT1, sT1, sT2))
    a("s_sub_u32 s%d, 256, s%d" % (sT2, sT1))
    a("s_cmp_eq_u32 s%d, 0" % sHALF)
    a("s_cselect_b32 s%d, s%d, s%d" % (sNU, sT1, sT2))
    a("s_cselect_b32 s%d, 0, s%d" % (sGR, sT1))
    a("v_bfe_u32 v%d, v%d, 2, 2" % (vT0, vL))
    a("v_lshlrev_b32 v%d, 8, v%d" % (vKO, vT0))
    a("v_lshrrev_b32 v%d, 4, v%d" % (vT1, vL))
    a("v_lshl_add_u32 v%d, v%d, 6, v%d" % (vKO, vT1, vKO))
    a("v_and_b32 v%d, 3, v%d" % (vT0, vL))
    a("v_lshl_add_u32 v%d, v%d, 4, v%d" % (vKO, vT0, vKO))
    a("v_lshlrev_b32 v%d, 4, v%d" % (vVO, vL))
    a("v_mov_b32 v%d, 0" % vZ)
    a("v_mov_b32 v%d, 1" % vONE)
    a("s_waitcnt lgkmcnt(0)")
    a("s_load_dword s%d, s[%d:%d], 0x%x" % (sEPO, P_WS, P_WS + 1, WS_EPOCH))
    a("s_lshl_b32 s%d, s%d, 20" % (sT0, sT3))
    a("s_lshl_b32 s%d, s%d, 12" % (sT1, sGR))
    a("s_add_u32 s%d, s%d, s%d" % (sT0, sT0, sT1))
    a("s_lshl_b32 s%d, s%d, 12" % (sT2, sNU))
    srd(a, sK, P_K, "s%d" % sT2, "s%d" % sT0)
    srd(a, sV, P_V, "s%d" % sT2, "s%d" % sT0)
    srd(a, sWS, P_WS, WS_SIZE)

    def get_tag():
        a("s_waitcnt lgkmcnt(0)")
        a("s_add_u32 s%d, s%d, 1" % (sEPO, sEPO))
        a("s_mul_i32 s%d, s%d, 0x9E3779B1" % (sTAG, sEPO))

    def masks():
        a("v_and_b32 v%d, 1, v%d" % (vT0, vL))
        a("v_lshlrev_b32 v%d, 4, v%d" % (vT0, vT0))
        a("v_mov_b32 v%d, 0xffff" % vT2)
        a("v_lshlrev_b32 v%d, v%d, v%d" % (vT2, vT0, vT2))
        a("v_bfe_u32 v%d, v%d, 1, 2" % (vT0, vL))
        for j in range(4):
            a("v_cmp_eq_u32 vcc, %d, v%d" % (j, vT0))
            a("v_cndmask_b32 v%d, 0, v%d, vcc" % (vM + j, vT2))

    def ring_fill():
        PW = OPT["pw"]
        for s_, cur in ((0, sCUR0), (1, sCUR1)):
            a("s_lshl_b32 s%d, s%d, 12" % (sOFF, cur))
            for j in range(4):
                if PW < 16:
                    a("s_waitcnt vmcnt(%d)" % (PW - 1))
                a("buffer_load_dwordx4 %s, v%d, %s, s%d offen offset:%d nt" % (vr(vRING + 32 * s_ + 4 * j, 4), vKO, sr(sK, 4), sOFF, j * 1024))
            for j in range(4):
                if PW < 16:
                    a("s_waitcnt vmcnt(%d)" % (PW - 1))
                a("buffer_load_dwordx4 %s, v%d, %s, s%d offen offset:%d nt" % (vr(vRING + 32 * s_ + 16 + 4 * j, 4), vVO, sr(sV, 4), sOFF, j * 1024))

    def housekeeping(tagl):
        a("s_cmp_lt_u32 s%d, 13" % sW)
        a("s_cbranch_scc1 %s_done" % tagl)
        a("s_cmp_eq_u32 s%d, 14" % sW)
        a("s_cbranch_scc1 %s_clr" % tagl)
        a("s_cmp_eq_u32 s%d, 13" % sW)
        a("s_cbranch_scc1 %s_zero" % tagl)
        a("v_mov_b32 v16, 32")
        a("ds_write_b32 v%d, v16 offset:%d" % (vZ, L_CNT))
        a("s_branch %s_done" % tagl)
        a.label("%s_clr" % tagl)
        for j in range(4):
            a("v_mov_b32 v%d, -1" % (16 + j))
        a("s_lshl_b32 s%d, s%d, 10" % (sT1, sLID))
        a("s_add_u32 s%d, s%d, 0x%x" % (sT1, sT1, WS_T))
        a("s_cmp_lt_u32 s%d, 72" % sLID)
        a("s_cselect_b32 s%d, s%d, 0x%x" % (sT1, sT1, WS_SIZE))
        a("buffer_store_dwordx4 %s, v%d, %s, s%d offen sc1" % (vr(16, 4), vVO, sr(sWS, 4), sT1))
        a("s_branch %s_done" % tagl)
        a.label("%s_zero" % tagl)
        a("s_cmp_lg_u32 s2, 255")
        a("s_cbranch_scc1 %s_done" % tagl)
        for j in range(4):
            a("v_mov_b32 v%d, 0" % (16 + j))
        a("s_mov_b32 s%d, 0x%x" % (sT1, WS_ACC1))
        for i in range(18):
            for j in range(4):
                a("buffer_store_dwordx4 %s, v%d, %s, s%d offen offset:%d sc1" % (vr(16, 4), vVO, sr(sWS, 4), sT1, j * 1024))
            if i < 17:
                a("s_add_u32 s%d, s%d, 4096" % (sT1, sT1))
        a("s_waitcnt vmcnt(0) lgkmcnt(0)")
        a("s_add_u32 s%d, s%d, 1" % (sT0, sEPO))
        a("s_mul_i32 s%d, s%d, 0x9E3779B1" % (sT0, sT0))
        a("v_mov_b32 v20, s%d" % sT0)
        a("s_mov_b32 s%d, 0x%x" % (sT1, WS_Z))
        a("s_mov_b64 exec, 1")
        a("buffer_store_dword v20, v%d, %s, s%d offen sc1" % (vZ, sr(sWS, 4), sT1))
        a("s_mov_b64 exec, -1")
        a.label("%s_done" % tagl)

    a("s_sub_u32 s%d, s2, 72" % sR0)
    a("s_cmp_lt_u32 s%d, 64" % sR0)
    a("s_cbranch_scc1 L_qprod")
    housekeeping("L_hk0")
    a("s_cmp_ge_u32 s2, 72")
    a("s_cbranch_scc1 L_np_ring")
    a("s_and_b32 s%d, s2, 7" % sT0)
    a("s_lshr_b32 s%d, s2, 3" % sT1)
    a("s_mul_i32 s%d, s%d, %d" % (sT0, sT0, 512 * 1152))
    a("s_lshl_b32 s%d, s%d, 7" % (sT1, sT1))
    a("s_add_u32 s%d, s%d, s%d" % (sT0, sT0, sT1))
    srd(a, sB_, P_WO, 511 * 1152 + 128, "s%d" % sT0)
    a("s_lshl_b32 s%d, s%d, 5" % (sT2, sW))
    dma_tile(a, 4, 3, 1152, sT2, str(L_W), sB_)
    a.label("L_np_ring")
    ring_fill()
    masks()
    get_tag()
    a("s_branch L_gather")

    a.label("L_qprod")
    xs = list(range(16, 25))
    a("s_cmp_ge_u32 s%d, 8" % sW)
    a("s_cbranch_scc1 L_qp_hi")
    a("s_mul_i32 s%d, s%d, 1152" % (sT0, sW))
    srd(a, sA, P_X, 1152, "s%d" % sT0)
    a("v_lshlrev_b32 v%d, 1, v%d" % (vT0, vL))
    for e in range(9):
        a("buffer_load_ushort v%d, v%d, %s, 0 offen offset:%d" % (xs[e], vT0, sr(sA, 4), e * 128))
    masks()
    a("s_mul_i32 s%d, s%d, %d" % (sT0, sW, ACT_PITCH))
    a("v_lshlrev_b32 v%d, 1, v%d" % (vT0, vL))
    a("v_add_u32 v%d, s%d, v%d" % (vT0, sT0, vT0))
    a.wait_vm_all()
    for e in range(9):
        a("v_lshlrev_b32 v%d, 16, v%d" % (xs[e], xs[e]))
    layernorm9(a, xs, 26)
    for e in range(9):
        a("v_cvt_pk_bf16_f32 v%d, v%d, v%d" % (xs[e], xs[e], xs[e]))
        a("ds_write_b16 v%d, v%d offset:%d" % (vT0, xs[e], L_ACT + e * 128))
    a("s_branch L_qp_b1")
    a.label("L_qp_hi")
    a("s_lshl_b32 s%d, s%d, 7" % (sT0, sR0))
    srd(a, sB_, P_WQ, 575 * 8192 + 128, "s%d" % sT0)
    a("s_sub_u32 s%d, s%d, 8" % (sT2, sW))
    a("s_mul_i32 s%d, s%d, 72" % (sT2, sT2))
    dma_tile(a, 9, 3, 8192, sT2, str(L_W), sB_)
    housekeeping("L_hk1")
    masks()
    a.wait_vm_all()
    a.label("L_qp_b1")
    get_tag()
    a.lgq = []
    a("s_barrier")
    a("s_cmp_ge_u32 s%d, 12" % sW)
    a("s_cbranch_scc1 L_qp_b2")
    frag_addrs(a, vT0, vT2, ACT_PITCH, 7)
    a("s_lshr_b32 s%d, s%d, 2" % (sT0, sW))
    a("s_mul_i32 s%d, s%d, 384" % (sT1, sT0))
    a("v_add_u32 v%d, s%d, v%d" % (vT0, sT1, vT0))
    a("s_mul_i32 s%d, s%d, %d" % (sT0, sT0, 192 * 128))
    a("s_and_b32 s%d, s%d, 3" % (sT1, sW))
    a("s_lshl_b32 s%d, s%d, 5" % (sT1, sT1))
    a("s_add_u32 s%d, s%d, s%d" % (sT0, sT0, sT1))
    a("s_add_u32 s%d, s%d, %d" % (sT0, sT0, L_W))
    a("v_add_u32 v%d, s%d, v%d" % (vT2, sT0, vT2))
    A0, B0, C = 56, 80, 104
    tg = []
    for s_ in range(6):
        a("ds_read_b128 %s, v%d offset:%d" % (vr(A0 + 4 * s_, 4), vT0, L_ACT + s_ * 64))
        a("ds_read_b64_tr_b16 %s, v%d offset:%d" % (vr(B0 + 4 * s_, 2), vT2, s_ * 4096))
        tg.append(a("ds_read_b64_tr_b16 %s, v%d offset:%d" % (vr(B0 + 4 * s_ + 2, 2), vT2, s_ * 4096 + 512)))
    a("v_lshlrev_b32 v%d, 8, v%d" % (vT0, vT1))
    a("v_and_b32 v%d, 15, v%d" % (vT2, vL))
    a("v_lshl_add_u32 v%d, v%d, 2, v%d" % (vT0, vT2, vT0))
    a("s_lshl_b32 s%d, s%d, 9" % (sT0, sW))
    a("v_add_u32 v%d, s%d, v%d" % (vT0, sT0, vT0))
    for s_ in range(6):
        a.wait_lg(tg[s_])
        a("v_mfma_f32_16x16x32_bf16 %s, %s, %s, %s" % (vr(C, 4), vr(A0 + 4 * s_, 4), vr(B0 + 4 * s_, 4), "0" if s_ == 0 else vr(C, 4)))
    set_exec(a, 0xffffffff)
    for j in range(4):
        a("ds_write_b32 v%d, v%d offset:%d" % (vT0, C + j, L_RED + j * 64))
    a("s_mov_b64 exec, -1")
    a.wait_lg_all()
    a.label("L_qp_b2")
    a("s_barrier")
    a("s_cmp_ge_u32 s%d, 4" % sW)
    a("s_cbranch_scc1 L_qp_ring")
    a("v_lshlrev_b32 v%d, 3, v%d" % (vT0, vL))
    a("s_lshl_b32 s%d, s%d, 9" % (sT0, sW))
    a("v_add_u32 v%d, s%d, v%d" % (vT0, sT0, vT0))
    for kp in range(3):
        a("ds_read_b64 %s, v%d offset:%d" % (vr(16 + 2 * kp, 2), vT0, L_RED + kp * 2048))
    a("v_lshrrev_b32 v%d, 3, v%d" % (vT1, vL))
    a("v_lshlrev_b32 v%d, 14, v%d" % (vT1, vT1))
    a("v_and_b32 v%d, 7, v%d" % (vT2, vL))
    a("v_lshl_add_u32 v%d, v%d, 3, v%d" % (vT1, vT2, vT1))
    a("s_lshl_b32 s%d, s%d, 8" % (sT0, sR0))
    a("s_lshl_b32 s%d, s%d, 6" % (sT1, sW))
    a("s_add_u32 s%d, s%d, s%d" % (sT0, sT0, sT1))
    a.wait_lg_all()
    a("v_add_f32 v16, v16, v18")
    a("v_add_f32 v17, v17, v19")
    a("v_add_f32 v16, v16, v20")
    a("v_add_f32 v17, v17, v21")
    a("v_cvt_pk_bf16_f32 v16, v16, v17")
    a("v_mov_b32 v17, s%d" % sTAG)
    a("buffer_store_dwordx2 v[16:17], v%d, %s, s%d offen sc1" % (vT1, sr(sWS, 4), sT0))
    stamp(a, 2)
    a.label("L_qp_ring")
    a("s_barrier")
    ring_fill()

    a.label("L_gather")
    a.vmq = []
    a("s_lshl_b32 s%d, s%d, 4" % (sT0, sHKV))
    a("s_add_u32 s%d, s%d, s%d" % (sT0, sT0, sW))
    a("s_lshl_b32 s%d, s%d, 6" % (sT0, sT0))
    a("s_lshl_b32 s%d, s%d, 14" % (sT2, sBB))
    a("s_add_u32 s%d, s%d, s%d" % (sT0, sT0, sT2))
    a("s_add_u32 s%d, s%d, s%d" % (sA, P_WS, sT0))
    a("s_addc_u32 s%d, s%d, 0" % (sA + 1, P_WS + 1))
    a("s_mov_b32 s%d, 0" % sSPIN)
    a.label("L_q_poll")
    a("s_load_dwordx16 s[%d:%d], s[%d:%d], 0 glc" % (sQD, sQD + 15, sA, sA + 1))
    a("s_waitcnt lgkmcnt(0)")
    a("s_add_u32 s%d, s%d, 1" % (sSPIN, sSPIN))
    a("s_xor_b32 s%d, s%d, s%d" % (sT0, sQD + 1, sTAG))
    for j in range(1, 8):
        a("s_xor_b32 s%d, s%d, s%d" % (sT1, sQD + 2 * j + 1, sTAG))
        a("s_or_b32 s%d, s%d, s%d" % (sT0, sT0, sT1))
    a("s_cmp_eq_u32 s%d, 0" % sT0)
    if OPT["noqwait"]:
        a("s_branch L_q_seen")
    a("s_cbranch_scc1 L_q_seen")
    a("s_sleep 12")
    a("s_cmp_lt_u32 s%d, %d" % (sSPIN, SPIN_MAX))
    a("s_cbranch_scc1 L_q_poll")
    a.label("L_q_seen")

    def grab():
        a("s_mov_b64 exec, 1")
        a("ds_add_rtn_u32 v%d, v%d, v%d offset:%d" % (vIDX, vZ, vONE, L_CNT))
        a("s_mov_b64 exec, -1")

    a("s_lshl_b32 s%d, s%d, 5" % (sT0, sW))
    a("v_mov_b32 v%d, s%d" % (vT0, sT0))
    for j in range(8):
        a("v_mov_b32 v%d, s%d" % (16 + j, sQD + 2 * j))
    a("s_mov_b64 exec, 1")
    a("ds_write_b128 v%d, %s offset:%d" % (vT0, vr(16, 4), L_QS))
    a("ds_write_b128 v%d, %s offset:%d" % (vT0, vr(20, 4), L_QS + 16))
    a("s_mov_b64 exec, -1")
    a("v_lshrrev_b32 v%d, 4, v%d" % (vT0, vL))
    a("v_and_b32 v%d, 3, v%d" % (vT1, vL))
    a("v_lshl_add_u32 v%d, v%d, 2, v%d" % (vT0, vT0, vT1))
    a("v_bfe_u32 v%d, v%d, 3, 1" % (vT1, vL))
    a("v_lshl_add_u32 v%d, v%d, 4, v%d" % (vT0, vT1, vT0))
    a("v_lshlrev_b32 v%d, 4, v%d" % (vT0, vT0))
    a.wait_lg_all()
    a("s_barrier")
    a("ds_read_b128 %s, v%d offset:%d" % (vr(vQ, 4), vT0, L_QS))
    grab()
    a("v_mov_b32 v%d, 0xff800000" % vMX)
    a("v_mov_b32 v%d, 0" % vLS)
    for j in range(4):
        a("v_mov_b32 v%d, 0" % (vACC + j))
    stamp(a, 3)

    def body(s_, cur):
        kb = vRING + 32 * s_
        vb = kb + 16
        a.wait_lg_all()
        a("v_readfirstlane_b32 s%d, v%d" % (sNEW, vIDX))
        grab()
        a("s_lshl_b32 s%d, s%d, 12" % (sOFF, sNEW))
        if OPT["nocomp"]:
            for j in range(4):
                a("s_waitcnt vmcnt(%d)" % (OPT["win"] - 1))
                a("buffer_load_dwordx4 %s, v%d, %s, s%d offen offset:%d nt" % (vr(kb + 4 * j, 4), vKO, sr(sK, 4), sOFF, j * 1024))
            for j in range(4):
                a("s_waitcnt vmcnt(%d)" % (OPT["win"] - 1))
                a("buffer_load_dwordx4 %s, v%d, %s, s%d offen offset:%d nt" % (vr(vb + 4 * j, 4), vVO, sr(sV, 4), sOFF, j * 1024))
            a("s_mov_b32 s%d, s%d" % (cur, sNEW))
            a.vmq = []
            return
        for j in range(4):
            a("s_waitcnt vmcnt(%d)" % (OPT["win"] - 1))
            a("v_mfma_f32_16x16x32_bf16 %s, %s, %s, 0" % (vr(vC + 4 * j, 4), vr(kb + 4 * j, 4), vr(vQ, 4)))
            a("buffer_load_dwordx4 %s, v%d, %s, s%d offen offset:%d nt" % (vr(kb + 4 * j, 4), vKO, sr(sK, 4), sOFF, j * 1024))
        for j in range(4):
            c = vC + 4 * j
            t = vS + j
            a("v_mov_b32_dpp v%d, v%d quad_perm:[0,0,0,0]%s" % (t, c, DPP))
            for i in range(1, 4):
                a("v_add_f32_dpp v%d, v%d, v%d quad_perm:[%d,%d,%d,%d]%s" % (t, c + i, t, i, i, i, i, DPP))
        for h in range(2):
            x, y, p = vS + 2 * h, vS + 2 * h + 1, vS + 4 + h
            a("v_cvt_pk_bf16_f32 v%d, v%d, v%d" % (p, x, y))
            a("v_lshlrev_b32 v%d, 16, v%d" % (x, p))
            a("v_and_b32 v%d, s%d, v%d" % (y, sHI, p))
            a("v_mul_f32 v%d, 0x%08x, v%d" % (x, SCALE, x))
            a("v_mul_f32 v%d, 0x%08x, v%d" % (y, SCALE, y))
            a("v_cvt_pk_bf16_f32 v%d, v%d, v%d" % (p, x, y))
            a("v_lshlrev_b32 v%d, 16, v%d" % (x, p))
            a("v_and_b32 v%d, s%d, v%d" % (y, sHI, p))
        mu, t = vS + 4, vS + 5
        a("v_max3_f32 v%d, v%d, v%d, v%d" % (mu, vS, vS + 1, vS + 2))
        a("v_max3_f32 v%d, v%d, v%d, v%d" % (mu, mu, vS + 3, vMX))
        allreduce(a, mu, t, "max", lo=False, hi=True)
        a("v_sub_f32 v%d, v%d, v%d" % (t, vMX, mu))
        a("v_mul_f32 v%d, 0x%08x, v%d" % (t, LOG2E, t))
        a("v_exp_f32 v%d, v%d" % (t, t))
        a("v_mov_b32 v%d, v%d" % (vMX, mu))
        a("v_mul_f32 v%d, 0x%08x, v%d" % (vNM, LOG2E ^ 0x80000000, mu))
        a("v_mul_f32 v%d, v%d, v%d" % (vLS, vLS, t))
        for j in range(4):
            a("v_mul_f32 v%d, v%d, v%d" % (vACC + j, vACC + j, t))
        for j in range(4):
            e = vS + j
            bb = vB + 4 * (j & 1)
            a("v_fma_f32 v%d, v%d, s%d, v%d" % (e, e, sL2E, vNM))
            a("v_exp_f32 v%d, v%d" % (e, e))
            a("v_add_f32 v%d, v%d, v%d" % (vLS, vLS, e))
            a("v_cvt_pk_bf16_f32 v%d, v%d, v%d" % (e, e, e))
            for i in range(4):
                a("v_and_b32 v%d, v%d, v%d" % (bb + i, e, vM + i))
            a("s_waitcnt vmcnt(%d)" % (OPT["win"] - 1))
            a("v_mfma_f32_16x16x32_bf16 %s, %s, %s, %s" % (vr(vACC, 4), vr(vb + 4 * j, 4), vr(bb, 4), vr(vACC, 4)))
            a("buffer_load_dwordx4 %s, v%d, %s, s%d offen offset:%d nt" % (vr(vb + 4 * j, 4), vVO, sr(sV, 4), sOFF, j * 1024))
        a("s_mov_b32 s%d, s%d" % (cur, sNEW))
        a.vmq = []

    a.label("L_loop")
    body(0, sCUR0)
    a("s_cmp_ge_u32 s%d, s%d" % (sCUR1, sNU))
    a("s_cbranch_scc1 L_loop_exit")
    body(1, sCUR1)
    a("s_cmp_lt_u32 s%d, s%d" % (sCUR0, sNU))
    a("s_cbranch_scc1 L_loop")
    a.label("L_loop_exit")
    allreduce(a, vLS, vT1, "add", lo=False, hi=True)
    a("s_lshl_b32 s%d, s%d, 10" % (sT0, sW))
    a("v_add_u32 v%d, s%d, v%d" % (vT0, sT0, vVO))
    a("ds_write_b128 v%d, %s offset:%d" % (vT0, vr(vACC, 4), L_RED))
    a("v_bfe_u32 v%d, v%d, 3, 1" % (vT1, vL))
    a("v_lshlrev_b32 v%d, 3, v%d" % (vT1, vT1))
    a("s_lshl_b32 s%d, s%d, 4" % (sT0, sW))
    a("v_add_u32 v%d, s%d, v%d" % (vT2, sT0, vT1))
    a("ds_write_b64 v%d, %s offset:%d" % (vT2, vr(vMX, 2), L_ML))
    a.wait_all()
    a("s_barrier")
    stamp(a, 4)
    a("s_cmp_ge_u32 s%d, 4" % sW)
    a("s_cbranch_scc1 L_tail")
    a("v_and_b32 v%d, 15, v%d" % (vT0, vL))
    a("v_lshlrev_b32 v%d, 4, v%d" % (vT0, vT0))
    a("v_lshrrev_b32 v%d, 5, v%d" % (vT1, vL))
    a("v_lshl_add_u32 v%d, v%d, 3, v%d" % (vT0, vT1, vT0))
    mt = a("ds_read_b64 v[8:9], v%d offset:%d" % (vT0, L_ML))
    a("v_lshlrev_b32 v%d, 2, v0" % vT2)
    otg = [a("ds_read_b32 v%d, v%d offset:%d" % (16 + w, vT2, L_RED + w * 1024)) for w in range(16)]
    a("v_lshlrev_b32 v%d, 3, v0" % vT2)
    a("s_lshl_b32 s%d, s%d, 11" % (sT0, sLID))
    a("s_add_u32 s%d, s%d, 0x%x" % (sT0, sT0, WS_PART))
    a("v_lshlrev_b32 v%d, 4, v%d" % (vT1, vT1))
    a("s_lshl_b32 s%d, s%d, 5" % (sT1, sLID))
    a("s_add_u32 s%d, s%d, 0x%x" % (sT1, sT1, WS_STAT))
    a("v_mov_b32 v13, s%d" % sTAG)
    a("v_mov_b32 v33, s%d" % sTAG)
    a("v_mov_b32 v35, s%d" % sTAG)
    a.wait_lg(mt)
    a("v_mov_b32 v32, v8")
    allreduce(a, 32, 0, "max", lo=True, hi=False)
    a("v_sub_f32 v8, v8, v32")
    a("v_mul_f32 v8, 0x%08x, v8" % LOG2E)
    a("v_exp_f32 v8, v8")
    a("v_mul_f32 v34, v8, v9")
    allreduce(a, 34, 0, "add", lo=True, hi=False)
    for w in range(16):
        a.wait_lg(otg[w])
        if w == 0:
            a("v_mul_f32_dpp v12, v8, v16 row_newbcast:0%s" % DPP)
        else:
            a("v_fmac_f32_dpp v12, v8, v%d row_newbcast:%d%s" % (16 + w, w, DPP))
    a("buffer_store_dwordx2 v[12:13], v%d, %s, s%d offen sc1" % (vT2, sr(sWS, 4), sT0))
    a("s_cmp_lg_u32 s%d, 0" % sW)
    a("s_cbranch_scc1 L_tail")
    set_exec(a, 0x100000001)
    a("buffer_store_dwordx4 v[32:35], v%d, %s, s%d offen sc1" % (vT1, sr(sWS, 4), sT1))
    a("s_mov_b64 exec, -1")

    a.label("L_tail")
    a("s_cmp_ge_u32 s2, 216")
    a("s_cbranch_scc1 L_fin")
    a("s_cmp_ge_u32 s2, 72")
    a("s_cbranch_scc1 L_GU")

    def acc_prepoll(lbl, thr):
        a("v_lshlrev_b32 v%d, 9, v%d" % (vT2, vL))
        a("s_mov_b32 s%d, 0x%x" % (sT0, WS_ACC1))
        a("s_mov_b32 s%d, 0x%x" % (sT1, WS_Z))
        a("s_mov_b32 s%d, 0" % sSPIN)
        a("s_mov_b64 exec, 0x1ff")
        a.label(lbl)
        a("buffer_load_dword v41, v%d, %s, s%d offen sc1" % (vT2, sr(sWS, 4), sT0))
        a("buffer_load_dword v42, v%d, %s, s%d offen sc1" % (vZ, sr(sWS, 4), sT1))
        a("s_add_u32 s%d, s%d, 1" % (sSPIN, sSPIN))
        a.wait_vm_all()
        a("v_and_b32 v41, 15, v41")
        a("v_cmp_eq_u32 vcc, s%d, v42" % sTAG)
        a("v_cndmask_b32 v41, 0, v41, vcc")
        a("v_cmp_gt_u32 vcc, %d, v41" % thr)
        a("s_cbranch_vccz %s_ok" % lbl)
        a("s_sleep 2")
        a("s_cmp_lt_u32 s%d, %d" % (sSPIN, SPIN_MAX))
        a("s_cbranch_scc1 %s" % lbl)
        a.label(lbl + "_ok")
        a("s_mov_b64 exec, -1")

    a("s_and_b32 s%d, s2, 7" % sR0)
    a("s_lshr_b32 s%d, s2, 3" % sR1)
    a("v_lshrrev_b32 v%d, 7, v0" % vT0)
    a("v_and_b32 v%d, 127, v0" % vT1)
    a("v_lshlrev_b32 v28, 12, v%d" % vT0)
    a("v_lshl_add_u32 v28, v%d, 4, v28" % vT1)
    a("v_bfe_u32 v%d, v%d, 4, 1" % (vT3, vT1))
    a("v_lshlrev_b32 v29, 6, v%d" % vT0)
    a("v_lshl_add_u32 v29, v%d, 4, v29" % vT3)
    a("v_mul_u32_u24 v30, %d, v%d" % (O_ACT_PITCH, vT0))
    a("v_lshl_add_u32 v30, v%d, 8, v30" % vT3)
    a("v_lshrrev_b32 v%d, 5, v%d" % (vT2, vT1))
    a("v_lshl_add_u32 v30, v%d, 6, v30" % vT2)
    a("v_and_b32 v%d, 1, v%d" % (vT2, vT1))
    a("v_lshl_add_u32 v30, v%d, 5, v30" % vT2)
    a("v_bfe_u32 v%d, v%d, 1, 3" % (vT2, vT1))
    a("v_lshl_add_u32 v30, v%d, 1, v30" % vT2)
    a("s_lshl_b32 s%d, s%d, 16" % (sQD, sR0))
    a("s_add_u32 s%d, s%d, 0x%x" % (sQD, sQD, WS_PART))
    a("s_add_u32 s%d, s%d, 0x8000" % (sQD + 1, sQD))
    a("s_lshl_b32 s%d, s%d, 10" % (sQD + 2, sR0))
    a("s_add_u32 s%d, s%d, 0x%x" % (sQD + 2, sQD + 2, WS_STAT))
    a("s_cmp_lg_u32 s%d, 4" % sW)
    a("s_cbranch_scc1 L_o_b5")
    a("s_mov_b32 s%d, 0x%x" % (sT1, WS_Z))
    a("s_mov_b32 s%d, 0" % sSPIN)
    a.label("L_e1")
    a("buffer_load_dwordx4 %s, v%d, %s, s%d offen sc1" % (vr(16, 4), vVO, sr(sWS, 4), sQD + 2))
    a("buffer_load_dword v20, v%d, %s, s%d offen sc1" % (vZ, sr(sWS, 4), sT1))
    a("s_add_u32 s%d, s%d, 1" % (sSPIN, sSPIN))
    a.wait_vm_all()
    a("v_xor_b32 v17, s%d, v17" % sTAG)
    a("v_xor_b32 v19, s%d, v19" % sTAG)
    a("v_xor_b32 v20, s%d, v20" % sTAG)
    a("v_or3_b32 v17, v17, v19, v20")
    a("v_cmp_eq_u32 vcc, 0, v17")
    a("s_bcnt1_i32_b64 s%d, vcc" % sT0)
    a("s_cmp_ge_u32 s%d, %d" % (sT0, OPT["othr"]))
    a("s_cbranch_scc1 L_o_b5")
    a("s_sleep 1")
    a("s_cmp_lt_u32 s%d, %d" % (sSPIN, SPIN_MAX))
    a("s_cbranch_scc1 L_e1")
    a.label("L_o_b5")
    a("s_barrier")
    stamp(a, 5)
    a("s_mov_b32 s%d, 0" % sSPIN)
    a.label("L_o_ld")
    for hk in range(2):
        r = 32 + 16 * hk
        a("buffer_load_dwordx4 %s, v28, %s, s%d offen sc1" % (vr(r, 4), sr(sWS, 4), sQD + hk))
        a("buffer_load_dwordx4 %s, v28, %s, s%d offen offset:2048 sc1" % (vr(r + 4, 4), sr(sWS, 4), sQD + hk))
        a("buffer_load_dwordx4 %s, v29, %s, s%d offen offset:%d sc1" % (vr(r + 8, 4), sr(sWS, 4), sQD + 2, hk * 512))
        a("buffer_load_dwordx4 %s, v29, %s, s%d offen offset:%d sc1" % (vr(r + 12, 4), sr(sWS, 4), sQD + 2, hk * 512 + 32))
    a("s_add_u32 s%d, s%d, 1" % (sSPIN, sSPIN))
    a.wait_vm_all()
    for j in range(16):
        a("v_xor_b32 v%d, s%d, v%d" % (33 + 2 * j, sTAG, 33 + 2 * j))
    a("v_or_b32 v33, v33, v35")
    for j in range(2, 16, 2):
        a("v_or3_b32 v33, v33, v%d, v%d" % (33 + 2 * j, 35 + 2 * j))
    a("v_cmp_ne_u32 vcc, 0, v33")
    a("s_cbranch_vccz L_o_ld_ok")
    a("s_sleep 1")
    a("s_cmp_lt_u32 s%d, %d" % (sSPIN, SPIN_MAX))
    a("s_cbranch_scc1 L_o_ld")
    a.label("L_o_ld_ok")
    for hk in range(2):
        r = 32 + 16 * hk
        o00, o01, o10, o11, m0_, l0, m1, l1 = r, r + 2, r + 4, r + 6, r + 8, r + 10, r + 12, r + 14
        M, e0, e1, den, n0, n1 = [16 + 6 * hk + i for i in range(6)]
        a("v_max_f32 v%d, v%d, v%d" % (M, m0_, m1))
        a("v_sub_f32 v%d, v%d, v%d" % (e0, m0_, M))
        a("v_sub_f32 v%d, v%d, v%d" % (e1, m1, M))
        a("v_mul_f32 v%d, 0x%08x, v%d" % (e0, LOG2E, e0))
        a("v_mul_f32 v%d, 0x%08x, v%d" % (e1, LOG2E, e1))
        a("v_exp_f32 v%d, v%d" % (e0, e0))
        a("v_exp_f32 v%d, v%d" % (e1, e1))
        a("v_mul_f32 v%d, v%d, v%d" % (den, e0, l0))
        a("v_fmac_f32 v%d, v%d, v%d" % (den, e1, l1))
        a("v_rcp_f32 v%d, v%d" % (den, den))
        a("v_mul_f32 v%d, v%d, v%d" % (n0, e0, o00))
        a("v_fmac_f32 v%d, v%d, v%d" % (n0, e1, o10))
        a("v_mul_f32 v%d, v%d, v%d" % (n1, e0, o01))
        a("v_fmac_f32 v%d, v%d, v%d" % (n1, e1, o11))
        a("v_mul_f32 v%d, v%d, v%d" % (n0, n0, den))
        a("v_mul_f32 v%d, v%d, v%d" % (n1, n1, den))
        a("v_cvt_pk_bf16_f32 v%d, v%d, v%d" % (n0, n0, n1))
        a("ds_write_b16 v30, v%d offset:%d" % (n0, L_ACT + hk * 512))
        a("ds_write_b16_d16_hi v30, v%d offset:%d" % (n0, L_ACT + hk * 512 + 16))
    frag_addrs(a, vT0, vT2, O_ACT_PITCH, 7)
    a("s_lshr_b32 s%d, s%d, 2" % (sT0, sW))
    a("s_lshl_b32 s%d, s%d, 8" % (sT1, sT0))
    a("v_add_u32 v%d, s%d, v%d" % (vT0, sT1, vT0))
    a("s_lshl_b32 s%d, s%d, 14" % (sT0, sT0))
    a("s_and_b32 s%d, s%d, 3" % (sT1, sW))
    a("s_lshl_b32 s%d, s%d, 5" % (sT1, sT1))
    a("s_add_u32 s%d, s%d, s%d" % (sT0, sT0, sT1))
    a("s_add_u32 s%d, s%d, %d" % (sT0, sT0, L_W))
    a("v_add_u32 v%d, s%d, v%d" % (vT2, sT0, vT2))
    A0, B0, C = 64, 80, 96
    for s_ in range(4):
        a("ds_read_b64_tr_b16 %s, v%d offset:%d" % (vr(B0 + 4 * s_, 2), vT2, s_ * 4096))
        a("ds_read_b64_tr_b16 %s, v%d offset:%d" % (vr(B0 + 4 * s_ + 2, 2), vT2, s_ * 4096 + 512))
    a.wait_lg_all()
    a("s_barrier")
    tg = [a("ds_read_b128 %s, v%d offset:%d" % (vr(A0 + 4 * s_, 4), vT0, L_ACT + s_ * 64)) for s_ in range(4)]
    a("v_lshlrev_b32 v31, 10, v%d" % vT1)
    a("v_and_b32 v%d, 15, v%d" % (vT2, vL))
    a("v_lshl_add_u32 v31, v%d, 2, v31" % vT2)
    a("s_lshr_b32 s%d, s%d, 2" % (sT0, sW))
    a("s_lshl_b32 s%d, s%d, 11" % (sT0, sT0))
    a("s_and_b32 s%d, s%d, 3" % (sT1, sW))
    a("s_lshl_b32 s%d, s%d, 6" % (sT1, sT1))
    a("s_add_u32 s%d, s%d, s%d" % (sT0, sT0, sT1))
    a("v_add_u32 v31, s%d, v31" % sT0)
    for s_ in range(4):
        a.wait_lg(tg[s_])
        a("v_mfma_f32_16x16x32_bf16 %s, %s, %s, %s" % (vr(C, 4), vr(A0 + 4 * s_, 4), vr(B0 + 4 * s_, 4), "0" if s_ == 0 else vr(C, 4)))
    set_exec(a, 0xffffffff)
    for j in range(4):
        a("ds_write_b32 v31, v%d offset:%d" % (C + j, L_RED + j * 256))
    a("s_mov_b64 exec, -1")
    a.wait_lg_all()
    a("s_barrier")
    a("s_cmp_ge_u32 s%d, 8" % sW)
    a("s_cbranch_scc1 L_d_dma")
    a("v_lshlrev_b32 v%d, 2, v0" % vT0)
    for h in range(4):
        a("ds_read_b32 v%d, v%d offset:%d" % (16 + h, vT0, L_RED + h * 2048))
    a("s_mul_i32 s%d, s%d, 4608" % (sT0, sW))
    a("s_lshl_b32 s%d, s%d, 9" % (sT1, sR1))
    a("s_add_u32 s%d, s%d, s%d" % (sT0, sT0, sT1))
    a("s_add_u32 s%d, s%d, 0x%x" % (sT0, sT0, WS_ACC1))
    a("v_lshlrev_b32 v%d, 3, v%d" % (vT1, vL))
    a.wait_lg_all()
    a("v_add_f32 v16, v16, v17")
    a("v_add_f32 v18, v18, v19")
    a("v_add_f32 v16, v16, v18")
    a("v_floor_f32 v17, v16")
    a("v_sub_f32 v16, v16, v17")
    a("v_cvt_i32_f32 v21, v17")
    a("v_mul_f32 v16, 0x4f800000, v16")
    a("v_cvt_u32_f32 v16, v16")
    a("v_and_or_b32 v20, v16, -16, 1")
    a("buffer_atomic_add_x2 v[20:21], v%d, %s, s%d offen sc1" % (vT1, sr(sWS, 4), sT0))
    stamp(a, 1)
    a.label("L_d_dma")
    a("s_cmp_ge_u32 s%d, 12" % sW)
    a("s_cbranch_scc1 L_d_nodma")
    a("s_mul_i32 s%d, s%d, %d" % (sT0, sR0, 576 * 1152))
    a("s_lshl_b32 s%d, s%d, 7" % (sT1, sR1))
    a("s_add_u32 s%d, s%d, s%d" % (sT0, sT0, sT1))
    srd(a, sB_, P_WD, 575 * 1152 + 128, "s%d" % sT0)
    a("s_mul_i32 s%d, s%d, 48" % (sT2, sW))
    dma_tile(a, 6, 3, 1152, sT2, str(L_W), sB_)
    a.label("L_d_nodma")
    a("s_cmp_lg_u32 s%d, 15" % sW)
    a("s_cbranch_scc1 L_d_b8")
    acc_prepoll("L_dpre", 8)
    a.label("L_d_b8")
    a.wait_vm_all()
    a("s_barrier")
    a("s_and_b32 s%d, s%d, 7" % (sT0, sW))
    a("s_mul_i32 s%d, s%d, 576" % (sT0, sT0))
    a("s_lshl_b32 s%d, s%d, 6" % (sT1, sR1))
    a("s_add_u32 s%d, s%d, s%d" % (sT0, sT0, sT1))
    a("v_add_u32 v70, s%d, v%d" % (sT0, vL))
    a("v_lshlrev_b32 v71, 1, v70")
    a("v_lshlrev_b32 v70, 3, v70")
    srd(a, sA, P_X, 9216)
    srd(a, sB_, P_OUT, 9216)
    a("s_mov_b32 s%d, 0x%x" % (sQD, WS_ACC1))
    a("s_mov_b32 s%d, 0x%x" % (sQD + 1, WS_ACC2))
    a("s_cmp_ge_u32 s%d, 9" % sW)
    a("s_cbranch_scc1 L_d_b9")
    a("buffer_load_ushort v72, v71, %s, 0 offen" % sr(sA, 4))
    a("buffer_load_dwordx2 v[74:75], v70, %s, s%d offen sc1" % (sr(sWS, 4), sQD))
    a("v_and_b32 v%d, 7, v%d" % (vT0, vL))
    a("v_mul_u32_u24 v%d, 9216, v%d" % (vT0, vT0))
    a("v_lshrrev_b32 v%d, 4, v%d" % (vT1, vL))
    a("v_lshl_add_u32 v%d, v%d, 4, v%d" % (vT0, vT1, vT0))
    a("s_mul_i32 s%d, s%d, 1152" % (sT0, sR0))
    a("s_lshl_b32 s%d, s%d, 7" % (sT1, sW))
    a("s_add_u32 s%d, s%d, s%d" % (sT0, sT0, sT1))
    a("s_add_u32 s%d, s%d, 0x%x" % (sT0, sT0, WS_T))
    a("v_bfe_u32 v%d, v%d, 2, 2" % (vT2, vL))
    a("v_lshl_add_u32 v%d, v%d, 3, v%d" % (vT2, vT1, vT2))
    a("v_lshlrev_b32 v%d, 7, v%d" % (vT2, vT2))
    a("v_and_b32 v%d, 3, v%d" % (vT3, vL))
    a("v_lshl_add_u32 v%d, v%d, 3, v%d" % (vT2, vT3, vT2))
    a("s_lshl_b32 s%d, s%d, 13" % (sT1, sW))
    a("s_add_u32 s%d, s%d, %d" % (sT1, sT1, L_W))
    a("v_add_u32 v%d, s%d, v%d" % (vT2, sT1, vT2))
    A0, B0, C = 8, 16, 48
    for s_ in range(2):
        for ct in range(4):
            r = B0 + 4 * (s_ * 4 + ct)
            a("ds_read_b64_tr_b16 %s, v%d offset:%d" % (vr(r, 2), vT2, s_ * 4096 + ct * 32))
            a("ds_read_b64_tr_b16 %s, v%d offset:%d" % (vr(r + 2, 2), vT2, s_ * 4096 + ct * 32 + 512))
    a("v_lshlrev_b32 v65, 10, v%d" % vT1)
    a("v_and_b32 v%d, 15, v%d" % (vT2, vL))
    a("v_lshl_add_u32 v65, v%d, 2, v65" % vT2)
    a("s_lshl_b32 s%d, s%d, 11" % (sT1, sW))
    a("v_add_u32 v65, s%d, v65" % sT1)
    a("s_mov_b32 s%d, 0" % sSPIN)
    a.label("L_d_poll")
    a("buffer_load_dwordx4 %s, v%d, %s, s%d offen sc1" % (vr(A0, 4), vT0, sr(sWS, 4), sT0))
    a("buffer_load_dwordx4 %s, v%d, %s, s%d offen offset:64 sc1" % (vr(A0 + 4, 4), vT0, sr(sWS, 4), sT0))
    a("s_add_u32 s%d, s%d, 1" % (sSPIN, sSPIN))
    a.wait_vm_all()
    a("v_max_u32 v64, v8, v9")
    a("v_max3_u32 v64, v64, v10, v11")
    a("v_max3_u32 v64, v64, v12, v13")
    a("v_max3_u32 v64, v64, v14, v15")
    a("v_cmp_eq_u32 vcc, -1, v64")
    a("s_cbranch_vccz L_d_ok")
    a("s_cmp_lt_u32 s%d, %d" % (sSPIN, SPIN_MAX))
    a("s_cbranch_scc1 L_d_poll")
    a.label("L_d_ok")
    stamp(a, 6)
    a.wait_lg_all()
    for s_ in range(2):
        for ct in range(4):
            a("v_mfma_f32_16x16x32_bf16 %s, %s, %s, %s" % (vr(C + 4 * ct, 4), vr(A0 + 4 * s_, 4), vr(B0 + 4 * (s_ * 4 + ct), 4), "0" if s_ == 0 else vr(C + 4 * ct, 4)))
    set_exec(a, 0xffffffff)
    for ct in range(4):
        for j in range(4):
            a("ds_write_b32 v65, v%d offset:%d" % (C + 4 * ct + j, L_RED + j * 256 + ct * 64))
    a("s_mov_b64 exec, -1")
    a.wait_lg_all()
    a.label("L_d_b9")
    a("s_barrier")
    a("s_cmp_ge_u32 s%d, 8" % sW)
    a("s_cbranch_scc1 L_d_final")
    a("v_lshlrev_b32 v%d, 2, v0" % vT0)
    tg = [a("ds_read_b32 v%d, v%d offset:%d" % (8 + w, vT0, L_RED + w * 2048)) for w in range(9)]
    a("v_and_b32 v76, 15, v74")
    a("v_cmp_ne_u32 vcc, 8, v76")
    a("s_cbranch_vccz L_d_hok")
    a("buffer_load_dwordx2 v[74:75], v70, %s, s%d offen sc1" % (sr(sWS, 4), sQD))
    a.wait_vm_all()
    a.label("L_d_hok")
    for w in range(1, 9):
        a.wait_lg(tg[w])
        a("v_add_f32 v8, v8, v%d" % (8 + w))
    a("v_floor_f32 v17, v8")
    a("v_sub_f32 v8, v8, v17")
    a("v_cvt_i32_f32 v21, v17")
    a("v_mul_f32 v8, 0x4f800000, v8")
    a("v_cvt_u32_f32 v8, v8")
    a("v_and_or_b32 v20, v8, -16, 1")
    a("v_mov_b32 v22, v20")
    a("v_mov_b32 v23, v21")
    a("buffer_atomic_add_x2 v[22:23], v70, %s, s%d offen sc0 sc1" % (sr(sWS, 4), sQD + 1))
    stamp(a, 2)
    a("v_lshlrev_b32 v72, 16, v72")
    fix2f(a, 75, 74, 75)
    bf16r(a, 75, 75)
    a("v_add_f32 v72, v72, v75")
    bf16r(a, 72, 72)
    a.wait_vm_all()
    a("v_add_co_u32 v22, vcc, v22, v20")
    a("v_addc_co_u32 v23, vcc, v23, v21, vcc")
    a("v_and_b32 v24, 15, v22")
    fix2f(a, 23, 22, 23)
    bf16r(a, 23, 23)
    a("v_add_f32 v72, v72, v23")
    a("v_cvt_pk_bf16_f32 v72, v72, v72")
    a("v_cmp_eq_u32 vcc, 8, v24")
    a("s_and_saveexec_b64 s[%d:%d], vcc" % (sQD + 2, sQD + 3))
    a("s_cbranch_execz L_d_nost")
    a("buffer_store_short v72, v71, %s, 0 offen" % sr(sB_, 4))
    a.label("L_d_nost")
    a("s_mov_b64 exec, -1")
    a("s_branch L_fin")
    a.label("L_d_final")
    a("s_cmp_lg_u32 s%d, 9" % sW)
    a("s_cbranch_scc1 L_fin")
    a("s_cmp_lg_u32 s2, 0")
    a("s_cbranch_scc1 L_fin")
    a("v_mov_b32 v%d, s%d" % (vT2, sEPO))
    a("s_mov_b32 s%d, 0x%x" % (sT0, WS_EPOCH))
    a("s_mov_b64 exec, 1")
    a("buffer_store_dword v%d, v%d, %s, s%d offen sc1" % (vT2, vZ, sr(sWS, 4), sT0))
    a("s_mov_b64 exec, -1")
    a("s_branch L_fin")

    a.label("L_GU")
    a("s_sub_u32 s%d, s2, 72" % sR0)
    a("s_cmp_lt_u32 s%d, 4" % sW)
    a("s_cbranch_scc1 L_g_nodma")
    a("s_lshl_b32 s%d, s%d, 6" % (sT2, sR0))
    a("s_cmp_ge_u32 s%d, 10" % sW)
    a("s_cselect_b32 s%d, s%d, s%d" % (sT0, P_WU, P_WG))
    a("s_cselect_b32 s%d, s%d, s%d" % (sT1, P_WU + 1, P_WG + 1))
    a("s_cselect_b32 s%d, 10, 4" % sT3)
    a("s_cselect_b32 s%d, %d, 0" % (sR1, 36864))
    a("s_add_u32 s%d, s%d, s%d" % (sB_, sT0, sT2))
    a("s_addc_u32 s%d, s%d, 0" % (sB_ + 1, sT1))
    a("s_mov_b32 s%d, %d" % (sB_ + 2, 575 * 9216 + 64))
    a("s_mov_b32 s%d, 0x00020000" % (sB_ + 3))
    a("s_sub_u32 s%d, s%d, s%d" % (sT2, sW, sT3))
    a("s_mul_i32 s%d, s%d, 96" % (sT2, sT2))
    a("s_add_u32 s%d, s%d, %d" % (sR1, sR1, L_W))
    dma_tile(a, 6, 2, 9216, sT2, "s%d" % sR1, sB_)
    a.label("L_g_nodma")
    xs = list(range(8, 17))
    a("s_cmp_ge_u32 s%d, 8" % sW)
    a("s_cbranch_scc1 L_g_b8")
    a("s_mul_i32 s%d, s%d, 1152" % (sT0, sW))
    srd(a, sA, P_X, 1152, "s%d" % sT0)
    a("v_lshlrev_b32 v%d, 1, v%d" % (vT0, vL))
    for e in range(9):
        a("buffer_load_ushort v%d, v%d, %s, 0 offen offset:%d" % (xs[e], vT0, sr(sA, 4), e * 128))
    a("s_cmp_lg_u32 s%d, 3" % sW)
    a("s_cbranch_scc1 L_g_b8")
    acc_prepoll("L_gpre", OPT["gthr"])
    a.label("L_g_b8")
    a("s_barrier")
    stamp(a, 5)
    a("s_cmp_ge_u32 s%d, 8" % sW)
    a("s_cbranch_scc1 L_g_b9")
    a("s_mul_i32 s%d, s%d, 4608" % (sT0, sW))
    a("s_add_u32 s%d, s%d, 0x%x" % (sT0, sT0, WS_ACC1))
    a("s_add_u32 s%d, s%d, 4096" % (sT1, sT0))
    a("v_lshlrev_b32 v%d, 3, v%d" % (vT1, vL))
    a("s_mul_i32 s%d, s%d, %d" % (sT2, sW, ACT_PITCH))
    a("v_add_u32 v%d, s%d, v%d" % (vT0, sT2, vT0))
    aa = 32
    a("s_mov_b32 s%d, 0" % sSPIN)
    a.label("L_g_ld")
    for e in range(9):
        a("buffer_load_dwordx2 %s, v%d, %s, s%d offen offset:%d sc1" % (vr(aa + 2 * e, 2), vT1, sr(sWS, 4), sT0 if e < 8 else sT1, (e & 7) * 512))
    a("s_add_u32 s%d, s%d, 1" % (sSPIN, sSPIN))
    a.wait_vm_all()
    a("v_and_b32 v50, v32, v34")
    a("v_or_b32 v51, v32, v34")
    for e in range(2, 9):
        a("v_and_b32 v50, v50, v%d" % (aa + 2 * e))
        a("v_or_b32 v51, v51, v%d" % (aa + 2 * e))
    a("v_and_b32 v50, 8, v50")
    a("v_and_or_b32 v50, v51, 7, v50")
    a("v_cmp_ne_u32 vcc, 8, v50")
    a("s_cbranch_vccz L_g_ld_ok")
    a("s_sleep 1")
    a("s_cmp_lt_u32 s%d, %d" % (sSPIN, SPIN_MAX))
    a("s_cbranch_scc1 L_g_ld")
    a.label("L_g_ld_ok")
    stamp(a, 6)
    for e in range(9):
        fix2f(a, aa + 2 * e + 1, aa + 2 * e, aa + 2 * e + 1)
        a("v_lshlrev_b32 v%d, 16, v%d" % (xs[e], xs[e]))
        bf16r(a, aa + 2 * e + 1, aa + 2 * e + 1)
        a("v_add_f32 v%d, v%d, v%d" % (xs[e], xs[e], aa + 2 * e + 1))
        bf16r(a, xs[e], xs[e])
    layernorm9(a, xs, 26)
    for e in range(9):
        a("v_cvt_pk_bf16_f32 v%d, v%d, v%d" % (xs[e], xs[e], xs[e]))
        a("ds_write_b16 v%d, v%d offset:%d" % (vT0, xs[e], L_ACT + e * 128))
    a.label("L_g_b9")
    frag_addrs(a, vT0, vT2, ACT_PITCH, 6)
    a("s_lshr_b32 s%d, s%d, 2" % (sT0, sW))
    a("s_mul_i32 s%d, s%d, 384" % (sT1, sT0))
    a("v_add_u32 v%d, s%d, v%d" % (vT0, sT1, vT0))
    a("s_mul_i32 s%d, s%d, %d" % (sT0, sT0, 192 * 64))
    a("s_and_b32 s%d, s%d, 1" % (sT1, sW))
    a("s_lshl_b32 s%d, s%d, 5" % (sT1, sT1))
    a("s_add_u32 s%d, s%d, s%d" % (sT0, sT0, sT1))
    a("s_bitcmp1_b32 s%d, 1" % sW)
    a("s_cselect_b32 s%d, %d, 0" % (sT1, 36864))
    a("s_add_u32 s%d, s%d, s%d" % (sT0, sT0, sT1))
    a("s_add_u32 s%d, s%d, %d" % (sT0, sT0, L_W))
    a("v_add_u32 v%d, s%d, v%d" % (vT2, sT0, vT2))
    a("v_lshlrev_b32 v60, 8, v%d" % vT1)
    a("v_and_b32 v%d, 15, v%d" % (vT3, vL))
    a("v_lshl_add_u32 v60, v%d, 2, v60" % vT3)
    a("s_lshl_b32 s%d, s%d, 9" % (sT0, sW))
    a("v_add_u32 v60, s%d, v60" % sT0)
    a.wait_all()
    a("s_barrier")
    a("s_cmp_ge_u32 s%d, 12" % sW)
    a("s_cbranch_scc1 L_g_b10")
    A0, B0, C = 8, 32, 56
    tg = []
    for s_ in range(6):
        a("ds_read_b128 %s, v%d offset:%d" % (vr(A0 + 4 * s_, 4), vT0, L_ACT + s_ * 64))
        a("ds_read_b64_tr_b16 %s, v%d offset:%d" % (vr(B0 + 4 * s_, 2), vT2, s_ * 2048))
        tg.append(a("ds_read_b64_tr_b16 %s, v%d offset:%d" % (vr(B0 + 4 * s_ + 2, 2), vT2, s_ * 2048 + 256)))
    for s_ in range(6):
        a.wait_lg(tg[s_])
        a("v_mfma_f32_16x16x32_bf16 %s, %s, %s, %s" % (vr(C, 4), vr(A0 + 4 * s_, 4), vr(B0 + 4 * s_, 4), "0" if s_ == 0 else vr(C, 4)))
    set_exec(a, 0xffffffff)
    for j in range(4):
        a("ds_write_b32 v60, v%d offset:%d" % (C + j, L_RED + j * 64))
    a("s_mov_b64 exec, -1")
    a.wait_lg_all()
    a.label("L_g_b10")
    a("s_barrier")
    a("s_cmp_ge_u32 s%d, 2" % sW)
    a("s_cbranch_scc1 L_fin")
    a("v_lshrrev_b32 v%d, 4, v0" % vT0)
    a("v_bfe_u32 v%d, v0, 3, 1" % vT1)
    a("v_lshlrev_b32 v%d, 9, v%d" % (vT1, vT1))
    a("v_lshl_add_u32 v%d, v%d, 6, v%d" % (vT1, vT0, vT1))
    a("v_and_b32 v%d, 7, v0" % vT2)
    a("v_lshl_add_u32 v%d, v%d, 3, v%d" % (vT1, vT2, vT1))
    for kp in range(3):
        a("ds_read_b64 %s, v%d offset:%d" % (vr(8 + 2 * kp, 2), vT1, L_RED + kp * 2048))
        a("ds_read_b64 %s, v%d offset:%d" % (vr(14 + 2 * kp, 2), vT1, L_RED + kp * 2048 + 1024))
    a("v_mul_u32_u24 v%d, 9216, v%d" % (vT0, vT0))
    a("v_and_b32 v%d, 15, v0" % vT2)
    a("v_lshl_add_u32 v%d, v%d, 2, v%d" % (vT0, vT2, vT0))
    a("s_lshl_b32 s%d, s%d, 6" % (sT0, sR0))
    a("s_add_u32 s%d, s%d, 0x%x" % (sT0, sT0, WS_T))
    a.wait_lg_all()
    for c in range(2):
        G, U = 8 + c, 14 + c
        a("v_add_f32 v%d, v%d, v%d" % (G, G, G + 2))
        a("v_add_f32 v%d, v%d, v%d" % (G, G, G + 4))
        a("v_add_f32 v%d, v%d, v%d" % (U, U, U + 2))
        a("v_add_f32 v%d, v%d, v%d" % (U, U, U + 4))
        bf16r(a, G, G)
        bf16r(a, U, U)
        gelu(a, G, 20 + 2 * c, 21 + 2 * c)
        bf16r(a, G, G)
        a("v_mul_f32 v%d, v%d, v%d" % (G, G, U))
    a("v_cvt_pk_bf16_f32 v8, v8, v9")
    a("buffer_store_dword v8, v%d, %s, s%d offen sc1" % (vT0, sr(sWS, 4), sT0))
    a.label("L_fin")
    if OPT["stamp"]:
        stamp(a, 7)
        a("s_waitcnt lgkmcnt(0)")
        for i in range(NSTAMP):
            a("v_writelane_b32 v126, s%d, %d" % (sST + 2 * i, i))
        a("s_getreg_b32 s%d, hwreg(HW_REG_XCC_ID)" % sT0)
        a("v_writelane_b32 v126, s%d, 15" % sT0)
        a("v_lshlrev_b32 v127, 2, v%d" % vL)
        a("s_lshl_b32 s%d, s2, 4" % sT0)
        a("s_add_u32 s%d, s%d, s%d" % (sT0, sT0, sW))
        a("s_lshl_b32 s%d, s%d, 6" % (sT0, sT0))
        a("s_add_u32 s%d, s%d, 0x%x" % (sT0, sT0, WS_STAMP))
        a("s_mov_b64 exec, 0xffff")
        a("buffer_store_dword v126, v127, %s, s%d offen" % (sr(sWS, 4), sT0))
    a.label("L_end")
    a("s_endpgm")
    nv = max(128, (a.maxv + 8) // 8 * 8)
    a.raw(""".section .rodata,"a"
.p2align 6
.amdhsa_kernel %s
  .amdhsa_next_free_vgpr %d
  .amdhsa_next_free_sgpr %d
  .amdhsa_accum_offset %d
  .amdhsa_group_segment_fixed_size 0
  .amdhsa_kernarg_size 96
  .amdhsa_user_sgpr_count 2
  .amdhsa_user_sgpr_kernarg_segment_ptr 1
  .amdhsa_system_sgpr_workgroup_id_x 1
  .amdhsa_float_denorm_mode_32 3
.end_amdhsa_kernel
""" % (name, nv, a.maxs + 1, nv))
    hdr = open("cdna_kernels/%s.s.ref" % NAME).read().split("; @launch")[0]
    hdr += "; @launch grid=(256,1,1) block=(1024,1,1) lds=%d\n" % LDS_BYTES
    hdr += '.amdgcn_target "amdgcn-amd-amdhsa--gfx950"\n.text\n'
    return hdr + a.text()


if __name__ == "__main__":
    args = sys.argv[1:]
    for k in list(args):
        if k.startswith("--"):
            kv = k[2:].split("=")
            OPT[kv[0]] = int(kv[1]) if len(kv) > 1 else 1
            args.remove(k)
    out = args[0] if args else "cdna_kernels/%s.s" % NAME
    open(out, "w").write(gen())
```

```python
import sys, struct, math
from asmlib import Asm, vr, sr

NAME = "sequential_preLN__gqa_block_cached__geglu_ffn__decode"
KNAME = NAME + "_kernel"

LOG2E = 0x3FB8AA3B
SCALE = 0x3DB504F3
INV576 = struct.unpack("<I", struct.pack("<f", 1.0 / 576.0))[0]
EPS = struct.unpack("<I", struct.pack("<f", 1e-5))[0]

WS_Q = 0x0
WS_PART = 0x20000
WS_STAT = 0xA0000
WS_Z = 0xA2000
WS_EPOCH = 0xA2800
WS_CNT = 0xA4000
WS_ACC1 = 0xB0000
WS_ACC2 = 0xB9000
WS_T = 0xD0000
WS_SIZE = 0x200000
WS_STAMP = 0x100000

P_X, P_K, P_V, P_WQ, P_WO, P_BX, P_WG, P_WU, P_WD, P_OUT, P_DBG, P_WS = [4 + 2 * i for i in range(12)]
DPP = " row_mask:0xf bank_mask:0xf"

L_CNT = 0
L_ML = 64
L_QS = 512
L_ACT = 1024
ACT_PITCH = 1168
O_ACT_PITCH = 1040
L_RED = 10368
L_W = 28800
LDS_BYTES = L_W + 73728

SPIN_MAX = 100000
OPT = dict(stamp=0, win=12, pw=4, noqwait=0, nocomp=0, wb=8, wq=22, othr=56, gthr=6, dbg=0)


def f32(x):
    return "0x%08x" % struct.unpack("<I", struct.pack("<f", x))[0]


def set_exec(a, m):
    a("s_mov_b32 exec_lo, 0x%x" % (m & 0xffffffff))
    a("s_mov_b32 exec_hi, 0x%x" % (m >> 32))


def srd(a, d, ptr, nbytes, off=None):
    if off is None:
        a("s_mov_b32 s%d, s%d" % (d, ptr))
        a("s_mov_b32 s%d, s%d" % (d + 1, ptr + 1))
    else:
        a("s_add_u32 s%d, s%d, %s" % (d, ptr, off))
        a("s_addc_u32 s%d, s%d, 0" % (d + 1, ptr + 1))
    a("s_mov_b32 s%d, %s" % (d + 2, nbytes if isinstance(nbytes, str) else "0x%x" % nbytes))
    a("s_mov_b32 s%d, 0x00020000" % (d + 3))


def allreduce(a, v, t, op="add", lo=True, hi=True):
    ins = "v_%s_f32" % op
    if lo:
        for m in ("quad_perm:[1,0,3,2]", "quad_perm:[2,3,0,1]", "row_half_mirror", "row_mirror"):
            a("%s_dpp v%d, v%d, v%d %s%s" % (ins, v, v, v, m, DPP))
    if hi:
        for sw in ("v_permlane16_swap_b32", "v_permlane32_swap_b32"):
            a("v_mov_b32 v%d, v%d" % (t, v))
            a("%s v%d, v%d" % (sw, v, t))
            a("%s v%d, v%d, v%d" % (ins, v, v, t))


def bf16r(a, d, s):
    a("v_cvt_pk_bf16_f32 v%d, v%d, v%d" % (d, s, s))
    a("v_lshlrev_b32 v%d, 16, v%d" % (d, d))


def layernorm9(a, xs, t0):
    s, t, mean, sd, rc, e = t0, t0 + 1, t0 + 2, t0 + 3, t0 + 4, t0 + 5
    a("v_add_f32 v%d, v%d, v%d" % (s, xs[0], xs[1]))
    for i in range(2, 9):
        a("v_add_f32 v%d, v%d, v%d" % (s, s, xs[i]))
    allreduce(a, s, t)
    a("v_mul_f32 v%d, 0x%08x, v%d" % (mean, INV576, s))
    a("v_sub_f32 v%d, v%d, v%d" % (t, xs[0], mean))
    a("v_mul_f32 v%d, v%d, v%d" % (s, t, t))
    for i in range(1, 9):
        a("v_sub_f32 v%d, v%d, v%d" % (t, xs[i], mean))
        a("v_fmac_f32 v%d, v%d, v%d" % (s, t, t))
    allreduce(a, s, t)
    a("v_mul_f32 v%d, 0x%08x, v%d" % (s, INV576, s))
    bf16r(a, s, s)
    a("v_add_f32 v%d, 0x%08x, v%d" % (s, EPS, s))
    bf16r(a, s, s)
    a("v_sqrt_f32 v%d, v%d" % (sd, s))
    bf16r(a, mean, mean)
    a("v_rcp_f32 v%d, v%d" % (rc, sd))
    a("v_fma_f32 v%d, -v%d, v%d, v%d" % (e, sd, sd, s))
    a("v_mul_f32 v%d, 0.5, v%d" % (rc, rc))
    a("v_fmac_f32 v%d, v%d, v%d" % (sd, e, rc))
    bf16r(a, sd, sd)
    a("v_rcp_f32 v%d, v%d" % (rc, sd))
    for i in range(9):
        a("v_sub_f32 v%d, v%d, v%d" % (xs[i], xs[i], mean))
        bf16r(a, xs[i], xs[i])
    for i in range(9):
        x = xs[i]
        a("v_mul_f32 v%d, v%d, v%d" % (t, x, rc))
        a("v_fma_f32 v%d, -v%d, v%d, v%d" % (e, t, sd, x))
        a("v_fma_f32 v%d, v%d, v%d, v%d" % (x, e, rc, t))


def gelu(a, x, y, t):
    c = -2.0 * math.sqrt(2.0 / math.pi) * 1.4426950408889634
    a("v_mul_f32 v%d, v%d, v%d" % (t, x, x))
    a("v_mul_f32 v%d, %s, v%d" % (t, f32(0.044715), t))
    a("v_fma_f32 v%d, v%d, v%d, v%d" % (y, t, x, x))
    a("v_mul_f32 v%d, %s, v%d" % (y, f32(c), y))
    a("v_exp_f32 v%d, v%d" % (y, y))
    a("v_add_f32 v%d, 1.0, v%d" % (y, y))
    a("v_rcp_f32 v%d, v%d" % (y, y))
    a("v_mul_f32 v%d, v%d, v%d" % (x, x, y))


def fix2f(a, d, lo, hi):
    a("v_and_b32 v%d, -16, v%d" % (lo, lo))
    a("v_cvt_f32_u32 v%d, v%d" % (lo, lo))
    a("v_cvt_f32_i32 v%d, v%d" % (d, hi))
    a("v_fmac_f32 v%d, 0x2f800000, v%d" % (d, lo))


sSPIN, sTAG = 1, 3
sK, sV, sWS, sA, sB_ = 28, 32, 36, 40, 44
sNU = 48
sGR = 50
sW, sHKV, sBB, sHALF, sLID = 52, 53, 54, 55, 56
sT0, sT1, sT2, sT3 = 57, 58, 59, 60
sCUR0, sCUR1, sNEW, sOFF = 61, 62, 63, 64
sHI, sL2E, sEPO = 65, 66, 67
sQD = 68
sR0, sR1 = 84, 85
sST = 86
NSTAMP = 8

vL, vKO, vVO, vT0, vT1, vT2, vT3 = 1, 2, 3, 4, 5, 6, 7
vM, vQ, vACC, vB, vC = 8, 12, 16, 20, 28
vMX, vLS, vNM, vIDX = 44, 45, 46, 47
vS = 48
vRING = 56
vZ, vONE = 120, 121


def stamp(a, i):
    if OPT["stamp"]:
        a.raw("    s_memrealtime s[%d:%d]" % (sST + 2 * i, sST + 1 + 2 * i))
        a.maxs = max(a.maxs, sST + 1 + 2 * i)


def dma_tile(a, nload, lanes_per_row_log2, row_stride, sRow0, lds_base, sd, nt=True):
    k = lanes_per_row_log2
    rows_per_load = 64 >> k
    a("v_lshrrev_b32 v%d, %d, v%d" % (vT0, k, vL))
    a("v_add_u32 v%d, s%d, v%d" % (vT0, sRow0, vT0))
    if row_stride == 8192:
        a("v_lshlrev_b32 v%d, 13, v%d" % (vT0, vT0))
    else:
        a("v_mul_u32_u24 v%d, %d, v%d" % (vT0, row_stride, vT0))
    a("v_and_b32 v%d, %d, v%d" % (vT1, (1 << k) - 1, vL))
    a("v_lshl_add_u32 v%d, v%d, 4, v%d" % (vT0, vT1, vT0))
    a("s_lshl_b32 s%d, s%d, %d" % (sT0, sRow0, 4 + k))
    a("s_add_u32 s%d, s%d, %s" % (sT0, sT0, lds_base))
    a("s_mov_b32 s%d, 0" % sT1)
    for i in range(nload):
        a("s_mov_b32 m0, s%d" % sT0)
        a("buffer_load_dwordx4 v%d, %s, s%d offen %slds" % (vT0, sr(sd, 4), sT1, "nt " if nt else ""))
        if i < nload - 1:
            a("s_add_u32 s%d, s%d, 1024" % (sT0, sT0))
            a("s_add_u32 s%d, s%d, %d" % (sT1, sT1, rows_per_load * row_stride))


def frag_addrs(a, vA, vBa, act_pitch, row_log2):
    a("v_and_b32 v%d, 7, v%d" % (vA, vL))
    a("v_mul_u32_u24 v%d, %d, v%d" % (vA, act_pitch, vA))
    a("v_lshrrev_b32 v%d, 4, v%d" % (vT1, vL))
    a("v_lshl_add_u32 v%d, v%d, 4, v%d" % (vA, vT1, vA))
    a("v_bfe_u32 v%d, v%d, 2, 2" % (vBa, vL))
    a("v_lshl_add_u32 v%d, v%d, 3, v%d" % (vBa, vT1, vBa))
    a("v_lshlrev_b32 v%d, %d, v%d" % (vBa, row_log2, vBa))
    a("v_and_b32 v%d, 3, v%d" % (vT3, vL))
    a("v_lshl_add_u32 v%d, v%d, 3, v%d" % (vBa, vT3, vBa))


def gen():
    a = Asm()
    name = KNAME
    a.raw(".globl %s\n.p2align 8\n.type %s,@function\n%s:" % (name, name, name))
    a("s_cmp_ge_u32 s2, 256")
    a("s_cbranch_scc1 L_end")
    a("s_load_dwordx16 s[4:19], s[0:1], 0")
    a("s_load_dwordx8 s[20:27], s[0:1], 64")
    if OPT["stamp"]:
        for i in range(NSTAMP):
            a("s_mov_b32 s%d, 0" % (sST + 2 * i))
    stamp(a, 0)
    a("v_and_b32 v%d, 63, v0" % vL)
    a("v_lshrrev_b32 v%d, 6, v0" % vT0)
    a("v_readfirstlane_b32 s%d, v%d" % (sW, vT0))
    a("s_lshr_b32 s%d, s2, 7" % sHALF)
    a("s_and_b32 s%d, s2, 127" % sT3)
    a("s_xor_b32 s%d, s%d, s%d" % (sT3, sT3, sHALF))
    a("s_and_b32 s%d, s%d, 15" % (sHKV, sT3))
    a("s_lshr_b32 s%d, s%d, 4" % (sBB, sT3))
    a("s_lshl_b32 s%d, s%d, 4" % (sLID, sHKV))
    a("s_lshl_b32 s%d, s%d, 1" % (sT0, sBB))
    a("s_add_u32 s%d, s%d, s%d" % (sLID, sLID, sT0))
    a("s_add_u32 s%d, s%d, s%d" % (sLID, sLID, sHALF))
    a("s_mov_b32 s%d, 0xffff0000" % sHI)
    a("s_mov_b32 s%d, 0x%08x" % (sL2E, LOG2E))
    a("s_mov_b32 s%d, s%d" % (sCUR0, sW))
    a("s_add_u32 s%d, s%d, 16" % (sCUR1, sW))
    def role_w(dst, src):
        a("s_cmp_lt_u32 s%d, 136" % src)
        a("s_cselect_b32 s%d, %d, 0" % (dst, OPT["wq"] // 2))
        a("s_cmp_lt_u32 s%d, 72" % src)
        a("s_cselect_b32 s%d, %d, s%d" % (dst, OPT["wb"] // 2, dst))
    a("s_xor_b32 s%d, s%d, 0x81" % (sT0, sT3))
    role_w(sT1, sT0)
    role_w(sT2, sT3)
    a("s_add_u32 s%d, s%d, 128" % (sT1, sT1))
    a("s_sub_u32 s%d, s%d, s%d" % (sT1, sT1, sT2))
    a("s_sub_u32 s%d, 256, s%d" % (sT2, sT1))
    a("s_cmp_eq_u32 s%d, 0" % sHALF)
    a("s_cselect_b32 s%d, s%d, s%d" % (sNU, sT1, sT2))
    a("s_cselect_b32 s%d, 0, s%d" % (sGR, sT1))
    a("v_bfe_u32 v%d, v%d, 2, 2" % (vT0, vL))
    a("v_lshlrev_b32 v%d, 8, v%d" % (vKO, vT0))
    a("v_lshrrev_b32 v%d, 4, v%d" % (vT1, vL))
    a("v_lshl_add_u32 v%d, v%d, 6, v%d" % (vKO, vT1, vKO))
    a("v_and_b32 v%d, 3, v%d" % (vT0, vL))
    a("v_lshl_add_u32 v%d, v%d, 4, v%d" % (vKO, vT0, vKO))
    a("v_lshlrev_b32 v%d, 4, v%d" % (vVO, vL))
    a("v_mov_b32 v%d, 0" % vZ)
    a("v_mov_b32 v%d, 1" % vONE)
    a("s_waitcnt lgkmcnt(0)")
    a("s_load_dword s%d, s[%d:%d], 0x%x" % (sEPO, P_WS, P_WS + 1, WS_EPOCH))
    a("s_lshl_b32 s%d, s%d, 20" % (sT0, sT3))
    a("s_lshl_b32 s%d, s%d, 12" % (sT1, sGR))
    a("s_add_u32 s%d, s%d, s%d" % (sT0, sT0, sT1))
    a("s_lshl_b32 s%d, s%d, 12" % (sT2, sNU))
    srd(a, sK, P_K, "s%d" % sT2, "s%d" % sT0)
    srd(a, sV, P_V, "s%d" % sT2, "s%d" % sT0)
    srd(a, sWS, P_WS, WS_SIZE)

    def get_tag():
        a("s_waitcnt lgkmcnt(0)")
        a("s_add_u32 s%d, s%d, 1" % (sEPO, sEPO))
        a("s_mul_i32 s%d, s%d, 0x9E3779B1" % (sTAG, sEPO))

    def masks():
        a("v_and_b32 v%d, 1, v%d" % (vT0, vL))
        a("v_lshlrev_b32 v%d, 4, v%d" % (vT0, vT0))
        a("v_mov_b32 v%d, 0xffff" % vT2)
        a("v_lshlrev_b32 v%d, v%d, v%d" % (vT2, vT0, vT2))
        a("v_bfe_u32 v%d, v%d, 1, 2" % (vT0, vL))
        for j in range(4):
            a("v_cmp_eq_u32 vcc, %d, v%d" % (j, vT0))
            a("v_cndmask_b32 v%d, 0, v%d, vcc" % (vM + j, vT2))

    def ring_fill():
        PW = OPT["pw"]
        for s_, cur in ((0, sCUR0), (1, sCUR1)):
            a("s_lshl_b32 s%d, s%d, 12" % (sOFF, cur))
            for j in range(4):
                if PW < 16:
                    a("s_waitcnt vmcnt(%d)" % (PW - 1))
                a("buffer_load_dwordx4 %s, v%d, %s, s%d offen offset:%d nt" % (vr(vRING + 32 * s_ + 4 * j, 4), vKO, sr(sK, 4), sOFF, j * 1024))
            for j in range(4):
                if PW < 16:
                    a("s_waitcnt vmcnt(%d)" % (PW - 1))
                a("buffer_load_dwordx4 %s, v%d, %s, s%d offen offset:%d nt" % (vr(vRING + 32 * s_ + 16 + 4 * j, 4), vVO, sr(sV, 4), sOFF, j * 1024))

    def housekeeping(tagl):
        a("s_cmp_lt_u32 s%d, 13" % sW)
        a("s_cbranch_scc1 %s_done" % tagl)
        a("s_cmp_eq_u32 s%d, 14" % sW)
        a("s_cbranch_scc1 %s_clr" % tagl)
        a("s_cmp_eq_u32 s%d, 13" % sW)
        a("s_cbranch_scc1 %s_zero" % tagl)
        a("v_mov_b32 v16, 32")
        a("ds_write_b32 v%d, v16 offset:%d" % (vZ, L_CNT))
        a("s_branch %s_done" % tagl)
        a.label("%s_clr" % tagl)
        for j in range(4):
            a("v_mov_b32 v%d, -1" % (16 + j))
        a("s_lshl_b32 s%d, s%d, 10" % (sT1, sLID))
        a("s_add_u32 s%d, s%d, 0x%x" % (sT1, sT1, WS_T))
        a("s_cmp_lt_u32 s%d, 72" % sLID)
        a("s_cselect_b32 s%d, s%d, 0x%x" % (sT1, sT1, WS_SIZE))
        a("buffer_store_dwordx4 %s, v%d, %s, s%d offen sc1" % (vr(16, 4), vVO, sr(sWS, 4), sT1))
        a("s_branch %s_done" % tagl)
        a.label("%s_zero" % tagl)
        a("s_cmp_lg_u32 s2, 255")
        a("s_cbranch_scc1 %s_done" % tagl)
        for j in range(4):
            a("v_mov_b32 v%d, 0" % (16 + j))
        a("s_mov_b32 s%d, 0x%x" % (sT1, WS_ACC1))
        for i in range(18):
            for j in range(4):
                a("buffer_store_dwordx4 %s, v%d, %s, s%d offen offset:%d sc1" % (vr(16, 4), vVO, sr(sWS, 4), sT1, j * 1024))
            if i < 17:
                a("s_add_u32 s%d, s%d, 4096" % (sT1, sT1))
        a("s_waitcnt vmcnt(0) lgkmcnt(0)")
        a("s_add_u32 s%d, s%d, 1" % (sT0, sEPO))
        a("s_mul_i32 s%d, s%d, 0x9E3779B1" % (sT0, sT0))
        a("v_mov_b32 v20, s%d" % sT0)
        a("s_mov_b32 s%d, 0x%x" % (sT1, WS_Z))
        a("s_mov_b64 exec, 1")
        a("buffer_store_dword v20, v%d, %s, s%d offen sc1" % (vZ, sr(sWS, 4), sT1))
        a("s_mov_b64 exec, -1")
        a.label("%s_done" % tagl)

    a("s_sub_u32 s%d, s2, 72" % sR0)
    a("s_cmp_lt_u32 s%d, 64" % sR0)
    a("s_cbranch_scc1 L_qprod")
    housekeeping("L_hk0")
    a("s_cmp_ge_u32 s2, 72")
    a("s_cbranch_scc1 L_np_ring")
    a("s_and_b32 s%d, s2, 7" % sT0)
    a("s_lshr_b32 s%d, s2, 3" % sT1)
    a("s_mul_i32 s%d, s%d, %d" % (sT0, sT0, 512 * 1152))
    a("s_lshl_b32 s%d, s%d, 7" % (sT1, sT1))
    a("s_add_u32 s%d, s%d, s%d" % (sT0, sT0, sT1))
    srd(a, sB_, P_WO, 511 * 1152 + 128, "s%d" % sT0)
    a("s_lshl_b32 s%d, s%d, 5" % (sT2, sW))
    dma_tile(a, 4, 3, 1152, sT2, str(L_W), sB_)
    a.label("L_np_ring")
    ring_fill()
    masks()
    get_tag()
    a("s_branch L_gather")

    a.label("L_qprod")
    xs = list(range(16, 25))
    a("s_cmp_ge_u32 s%d, 8" % sW)
    a("s_cbranch_scc1 L_qp_hi")
    a("s_mul_i32 s%d, s%d, 1152" % (sT0, sW))
    srd(a, sA, P_X, 1152, "s%d" % sT0)
    a("v_lshlrev_b32 v%d, 1, v%d" % (vT0, vL))
    for e in range(9):
        a("buffer_load_ushort v%d, v%d, %s, 0 offen offset:%d" % (xs[e], vT0, sr(sA, 4), e * 128))
    masks()
    a("s_mul_i32 s%d, s%d, %d" % (sT0, sW, ACT_PITCH))
    a("v_lshlrev_b32 v%d, 1, v%d" % (vT0, vL))
    a("v_add_u32 v%d, s%d, v%d" % (vT0, sT0, vT0))
    a.wait_vm_all()
    for e in range(9):
        a("v_lshlrev_b32 v%d, 16, v%d" % (xs[e], xs[e]))
    layernorm9(a, xs, 26)
    for e in range(9):
        a("v_cvt_pk_bf16_f32 v%d, v%d, v%d" % (xs[e], xs[e], xs[e]))
        a("ds_write_b16 v%d, v%d offset:%d" % (vT0, xs[e], L_ACT + e * 128))
    a("s_branch L_qp_b1")
    a.label("L_qp_hi")
    a("s_lshl_b32 s%d, s%d, 7" % (sT0, sR0))
    srd(a, sB_, P_WQ, 575 * 8192 + 128, "s%d" % sT0)
    a("s_sub_u32 s%d, s%d, 8" % (sT2, sW))
    a("s_mul_i32 s%d, s%d, 72" % (sT2, sT2))
    dma_tile(a, 9, 3, 8192, sT2, str(L_W), sB_)
    housekeeping("L_hk1")
    masks()
    a.wait_vm_all()
    a.label("L_qp_b1")
    get_tag()
    a.lgq = []
    a("s_barrier")
    a("s_cmp_ge_u32 s%d, 12" % sW)
    a("s_cbranch_scc1 L_qp_b2")
    frag_addrs(a, vT0, vT2, ACT_PITCH, 7)
    a("s_lshr_b32 s%d, s%d, 2" % (sT0, sW))
    a("s_mul_i32 s%d, s%d, 384" % (sT1, sT0))
    a("v_add_u32 v%d, s%d, v%d" % (vT0, sT1, vT0))
    a("s_mul_i32 s%d, s%d, %d" % (sT0, sT0, 192 * 128))
    a("s_and_b32 s%d, s%d, 3" % (sT1, sW))
    a("s_lshl_b32 s%d, s%d, 5" % (sT1, sT1))
    a("s_add_u32 s%d, s%d, s%d" % (sT0, sT0, sT1))
    a("s_add_u32 s%d, s%d, %d" % (sT0, sT0, L_W))
    a("v_add_u32 v%d, s%d, v%d" % (vT2, sT0, vT2))
    A0, B0, C = 56, 80, 104
    tg = []
    for s_ in range(6):
        a("ds_read_b128 %s, v%d offset:%d" % (vr(A0 + 4 * s_, 4), vT0, L_ACT + s_ * 64))
        a("ds_read_b64_tr_b16 %s, v%d offset:%d" % (vr(B0 + 4 * s_, 2), vT2, s_ * 4096))
        tg.append(a("ds_read_b64_tr_b16 %s, v%d offset:%d" % (vr(B0 + 4 * s_ + 2, 2), vT2, s_ * 4096 + 512)))
    a("v_lshlrev_b32 v%d, 8, v%d" % (vT0, vT1))
    a("v_and_b32 v%d, 15, v%d" % (vT2, vL))
    a("v_lshl_add_u32 v%d, v%d, 2, v%d" % (vT0, vT2, vT0))
    a("s_lshl_b32 s%d, s%d, 9" % (sT0, sW))
    a("v_add_u32 v%d, s%d, v%d" % (vT0, sT0, vT0))
    for s_ in range(6):
        a.wait_lg(tg[s_])
        a("v_mfma_f32_16x16x32_bf16 %s, %s, %s, %s" % (vr(C, 4), vr(A0 + 4 * s_, 4), vr(B0 + 4 * s_, 4), "0" if s_ == 0 else vr(C, 4)))
    set_exec(a, 0xffffffff)
    for j in range(4):
        a("ds_write_b32 v%d, v%d offset:%d" % (vT0, C + j, L_RED + j * 64))
    a("s_mov_b64 exec, -1")
    a.wait_lg_all()
    a.label("L_qp_b2")
    a("s_barrier")
    a("s_cmp_ge_u32 s%d, 4" % sW)
    a("s_cbranch_scc1 L_qp_ring")
    a("v_lshlrev_b32 v%d, 3, v%d" % (vT0, vL))
    a("s_lshl_b32 s%d, s%d, 9" % (sT0, sW))
    a("v_add_u32 v%d, s%d, v%d" % (vT0, sT0, vT0))
    for kp in range(3):
        a("ds_read_b64 %s, v%d offset:%d" % (vr(16 + 2 * kp, 2), vT0, L_RED + kp * 2048))
    a("v_lshrrev_b32 v%d, 3, v%d" % (vT1, vL))
    a("v_lshlrev_b32 v%d, 14, v%d" % (vT1, vT1))
    a("v_and_b32 v%d, 7, v%d" % (vT2, vL))
    a("v_lshl_add_u32 v%d, v%d, 3, v%d" % (vT1, vT2, vT1))
    a("s_lshl_b32 s%d, s%d, 8" % (sT0, sR0))
    a("s_lshl_b32 s%d, s%d, 6" % (sT1, sW))
    a("s_add_u32 s%d, s%d, s%d" % (sT0, sT0, sT1))
    a.wait_lg_all()
    a("v_add_f32 v16, v16, v18")
    a("v_add_f32 v17, v17, v19")
    a("v_add_f32 v16, v16, v20")
    a("v_add_f32 v17, v17, v21")
    a("v_cvt_pk_bf16_f32 v16, v16, v17")
    a("v_mov_b32 v17, s%d" % sTAG)
    a("buffer_store_dwordx2 v[16:17], v%d, %s, s%d offen sc1" % (vT1, sr(sWS, 4), sT0))
    stamp(a, 2)
    a.label("L_qp_ring")
    a("s_barrier")
    ring_fill()

    a.label("L_gather")
    a.vmq = []
    a("s_lshl_b32 s%d, s%d, 4" % (sT0, sHKV))
    a("s_add_u32 s%d, s%d, s%d" % (sT0, sT0, sW))
    a("s_lshl_b32 s%d, s%d, 6" % (sT0, sT0))
    a("s_lshl_b32 s%d, s%d, 14" % (sT2, sBB))
    a("s_add_u32 s%d, s%d, s%d" % (sT0, sT0, sT2))
    a("s_add_u32 s%d, s%d, s%d" % (sA, P_WS, sT0))
    a("s_addc_u32 s%d, s%d, 0" % (sA + 1, P_WS + 1))
    a("s_mov_b32 s%d, 0" % sSPIN)
    a.label("L_q_poll")
    a("s_load_dwordx16 s[%d:%d], s[%d:%d], 0 glc" % (sQD, sQD + 15, sA, sA + 1))
    a("s_waitcnt lgkmcnt(0)")
    a("s_add_u32 s%d, s%d, 1" % (sSPIN, sSPIN))
    a("s_xor_b32 s%d, s%d, s%d" % (sT0, sQD + 1, sTAG))
    for j in range(1, 8):
        a("s_xor_b32 s%d, s%d, s%d" % (sT1, sQD + 2 * j + 1, sTAG))
        a("s_or_b32 s%d, s%d, s%d" % (sT0, sT0, sT1))
    a("s_cmp_eq_u32 s%d, 0" % sT0)
    if OPT["noqwait"]:
        a("s_branch L_q_seen")
    a("s_cbranch_scc1 L_q_seen")
    a("s_sleep 12")
    a("s_cmp_lt_u32 s%d, %d" % (sSPIN, SPIN_MAX))
    a("s_cbranch_scc1 L_q_poll")
    a.label("L_q_seen")

    def grab():
        a("s_mov_b64 exec, 1")
        a("ds_add_rtn_u32 v%d, v%d, v%d offset:%d" % (vIDX, vZ, vONE, L_CNT))
        a("s_mov_b64 exec, -1")

    a("s_lshl_b32 s%d, s%d, 5" % (sT0, sW))
    a("v_mov_b32 v%d, s%d" % (vT0, sT0))
    for j in range(8):
        a("v_mov_b32 v%d, s%d" % (16 + j, sQD + 2 * j))
    a("s_mov_b64 exec, 1")
    a("ds_write_b128 v%d, %s offset:%d" % (vT0, vr(16, 4), L_QS))
    a("ds_write_b128 v%d, %s offset:%d" % (vT0, vr(20, 4), L_QS + 16))
    a("s_mov_b64 exec, -1")
    a("v_lshrrev_b32 v%d, 4, v%d" % (vT0, vL))
    a("v_and_b32 v%d, 3, v%d" % (vT1, vL))
    a("v_lshl_add_u32 v%d, v%d, 2, v%d" % (vT0, vT0, vT1))
    a("v_bfe_u32 v%d, v%d, 3, 1" % (vT1, vL))
    a("v_lshl_add_u32 v%d, v%d, 4, v%d" % (vT0, vT1, vT0))
    a("v_lshlrev_b32 v%d, 4, v%d" % (vT0, vT0))
    a.wait_lg_all()
    a("s_barrier")
    a("ds_read_b128 %s, v%d offset:%d" % (vr(vQ, 4), vT0, L_QS))
    grab()
    a("v_mov_b32 v%d, 0xff800000" % vMX)
    a("v_mov_b32 v%d, 0" % vLS)
    for j in range(4):
        a("v_mov_b32 v%d, 0" % (vACC + j))
    stamp(a, 3)

    def body(s_, cur):
        kb = vRING + 32 * s_
        vb = kb + 16
        a.wait_lg_all()
        a("v_readfirstlane_b32 s%d, v%d" % (sNEW, vIDX))
        grab()
        a("s_lshl_b32 s%d, s%d, 12" % (sOFF, sNEW))
        if OPT["nocomp"]:
            for j in range(4):
                a("s_waitcnt vmcnt(%d)" % (OPT["win"] - 1))
                a("buffer_load_dwordx4 %s, v%d, %s, s%d offen offset:%d nt" % (vr(kb + 4 * j, 4), vKO, sr(sK, 4), sOFF, j * 1024))
            for j in range(4):
                a("s_waitcnt vmcnt(%d)" % (OPT["win"] - 1))
                a("buffer_load_dwordx4 %s, v%d, %s, s%d offen offset:%d nt" % (vr(vb + 4 * j, 4), vVO, sr(sV, 4), sOFF, j * 1024))
            a("s_mov_b32 s%d, s%d" % (cur, sNEW))
            a.vmq = []
            return
        for j in range(4):
            a("s_waitcnt vmcnt(%d)" % (OPT["win"] - 1))
            a("v_mfma_f32_16x16x32_bf16 %s, %s, %s, 0" % (vr(vC + 4 * j, 4), vr(kb + 4 * j, 4), vr(vQ, 4)))
            a("buffer_load_dwordx4 %s, v%d, %s, s%d offen offset:%d nt" % (vr(kb + 4 * j, 4), vKO, sr(sK, 4), sOFF, j * 1024))
        for j in range(4):
            c = vC + 4 * j
            t = vS + j
            a("v_mov_b32_dpp v%d, v%d quad_perm:[0,0,0,0]%s" % (t, c, DPP))
            for i in range(1, 4):
                a("v_add_f32_dpp v%d, v%d, v%d quad_perm:[%d,%d,%d,%d]%s" % (t, c + i, t, i, i, i, i, DPP))
        for h in range(2):
            x, y, p = vS + 2 * h, vS + 2 * h + 1, vS + 4 + h
            a("v_cvt_pk_bf16_f32 v%d, v%d, v%d" % (p, x, y))
            a("v_lshlrev_b32 v%d, 16, v%d" % (x, p))
            a("v_and_b32 v%d, s%d, v%d" % (y, sHI, p))
            a("v_mul_f32 v%d, 0x%08x, v%d" % (x, SCALE, x))
            a("v_mul_f32 v%d, 0x%08x, v%d" % (y, SCALE, y))
            a("v_cvt_pk_bf16_f32 v%d, v%d, v%d" % (p, x, y))
            a("v_lshlrev_b32 v%d, 16, v%d" % (x, p))
            a("v_and_b32 v%d, s%d, v%d" % (y, sHI, p))
        mu, t = vS + 4, vS + 5
        a("v_max3_f32 v%d, v%d, v%d, v%d" % (mu, vS, vS + 1, vS + 2))
        a("v_max3_f32 v%d, v%d, v%d, v%d" % (mu, mu, vS + 3, vMX))
        allreduce(a, mu, t, "max", lo=False, hi=True)
        a("v_sub_f32 v%d, v%d, v%d" % (t, vMX, mu))
        a("v_mul_f32 v%d, 0x%08x, v%d" % (t, LOG2E, t))
        a("v_exp_f32 v%d, v%d" % (t, t))
        a("v_mov_b32 v%d, v%d" % (vMX, mu))
        a("v_mul_f32 v%d, 0x%08x, v%d" % (vNM, LOG2E ^ 0x80000000, mu))
        a("v_mul_f32 v%d, v%d, v%d" % (vLS, vLS, t))
        for j in range(4):
            a("v_mul_f32 v%d, v%d, v%d" % (vACC + j, vACC + j, t))
        for j in range(4):
            e = vS + j
            bb = vB + 4 * (j & 1)
            a("v_fma_f32 v%d, v%d, s%d, v%d" % (e, e, sL2E, vNM))
            a("v_exp_f32 v%d, v%d" % (e, e))
            a("v_add_f32 v%d, v%d, v%d" % (vLS, vLS, e))
            a("v_cvt_pk_bf16_f32 v%d, v%d, v%d" % (e, e, e))
            for i in range(4):
                a("v_and_b32 v%d, v%d, v%d" % (bb + i, e, vM + i))
            a("s_waitcnt vmcnt(%d)" % (OPT["win"] - 1))
            a("v_mfma_f32_16x16x32_bf16 %s, %s, %s, %s" % (vr(vACC, 4), vr(vb + 4 * j, 4), vr(bb, 4), vr(vACC, 4)))
            a("buffer_load_dwordx4 %s, v%d, %s, s%d offen offset:%d nt" % (vr(vb + 4 * j, 4), vVO, sr(sV, 4), sOFF, j * 1024))
        a("s_mov_b32 s%d, s%d" % (cur, sNEW))
        a.vmq = []

    a.label("L_loop")
    body(0, sCUR0)
    a("s_cmp_ge_u32 s%d, s%d" % (sCUR1, sNU))
    a("s_cbranch_scc1 L_loop_exit")
    body(1, sCUR1)
    a("s_cmp_lt_u32 s%d, s%d" % (sCUR0, sNU))
    a("s_cbranch_scc1 L_loop")
    a.label("L_loop_exit")
    allreduce(a, vLS, vT1, "add", lo=False, hi=True)
    a("s_lshl_b32 s%d, s%d, 10" % (sT0, sW))
    a("v_add_u32 v%d, s%d, v%d" % (vT0, sT0, vVO))
    a("ds_write_b128 v%d, %s offset:%d" % (vT0, vr(vACC, 4), L_RED))
    a("v_bfe_u32 v%d, v%d, 3, 1" % (vT1, vL))
    a("v_lshlrev_b32 v%d, 3, v%d" % (vT1, vT1))
    a("s_lshl_b32 s%d, s%d, 4" % (sT0, sW))
    a("v_add_u32 v%d, s%d, v%d" % (vT2, sT0, vT1))
    a("ds_write_b64 v%d, %s offset:%d" % (vT2, vr(vMX, 2), L_ML))
    a.wait_all()
    a("s_barrier")
    stamp(a, 4)
    a("s_cmp_ge_u32 s%d, 4" % sW)
    a("s_cbranch_scc1 L_tail")
    a("v_and_b32 v%d, 15, v%d" % (vT0, vL))
    a("v_lshlrev_b32 v%d, 4, v%d" % (vT0, vT0))
    a("v_lshrrev_b32 v%d, 5, v%d" % (vT1, vL))
    a("v_lshl_add_u32 v%d, v%d, 3, v%d" % (vT0, vT1, vT0))
    mt = a("ds_read_b64 v[8:9], v%d offset:%d" % (vT0, L_ML))
    a("v_lshlrev_b32 v%d, 2, v0" % vT2)
    otg = [a("ds_read_b32 v%d, v%d offset:%d" % (16 + w, vT2, L_RED + w * 1024)) for w in range(16)]
    a("v_lshlrev_b32 v%d, 3, v0" % vT2)
    a("s_lshl_b32 s%d, s%d, 11" % (sT0, sLID))
    a("s_add_u32 s%d, s%d, 0x%x" % (sT0, sT0, WS_PART))
    a("v_lshlrev_b32 v%d, 4, v%d" % (vT1, vT1))
    a("s_lshl_b32 s%d, s%d, 5" % (sT1, sLID))
    a("s_add_u32 s%d, s%d, 0x%x" % (sT1, sT1, WS_STAT))
    a("v_mov_b32 v13, s%d" % sTAG)
    a("v_mov_b32 v33, s%d" % sTAG)
    a("v_mov_b32 v35, s%d" % sTAG)
    a.wait_lg(mt)
    a("v_mov_b32 v32, v8")
    allreduce(a, 32, 0, "max", lo=True, hi=False)
    a("v_sub_f32 v8, v8, v32")
    a("v_mul_f32 v8, 0x%08x, v8" % LOG2E)
    a("v_exp_f32 v8, v8")
    a("v_mul_f32 v34, v8, v9")
    allreduce(a, 34, 0, "add", lo=True, hi=False)
    for w in range(16):
        a.wait_lg(otg[w])
        if w == 0:
            a("v_mul_f32_dpp v12, v8, v16 row_newbcast:0%s" % DPP)
        else:
            a("v_fmac_f32_dpp v12, v8, v%d row_newbcast:%d%s" % (16 + w, w, DPP))
    a("buffer_store_dwordx2 v[12:13], v%d, %s, s%d offen sc1" % (vT2, sr(sWS, 4), sT0))
    a("s_cmp_lg_u32 s%d, 0" % sW)
    a("s_cbranch_scc1 L_tail")
    set_exec(a, 0x100000001)
    a("buffer_store_dwordx4 v[32:35], v%d, %s, s%d offen sc1" % (vT1, sr(sWS, 4), sT1))
    a("s_mov_b64 exec, -1")

    a.label("L_tail")
    a("s_cmp_ge_u32 s2, 216")
    a("s_cbranch_scc1 L_fin")
    a("s_cmp_ge_u32 s2, 72")
    a("s_cbranch_scc1 L_GU")

    def acc_prepoll(lbl, thr):
        a("v_lshlrev_b32 v%d, 9, v%d" % (vT2, vL))
        a("s_mov_b32 s%d, 0x%x" % (sT0, WS_ACC1))
        a("s_mov_b32 s%d, 0x%x" % (sT1, WS_Z))
        a("s_mov_b32 s%d, 0" % sSPIN)
        a("s_mov_b64 exec, 0x1ff")
        a.label(lbl)
        a("buffer_load_dword v41, v%d, %s, s%d offen sc1" % (vT2, sr(sWS, 4), sT0))
        a("buffer_load_dword v42, v%d, %s, s%d offen sc1" % (vZ, sr(sWS, 4), sT1))
        a("s_add_u32 s%d, s%d, 1" % (sSPIN, sSPIN))
        a.wait_vm_all()
        a("v_and_b32 v41, 15, v41")
        a("v_cmp_eq_u32 vcc, s%d, v42" % sTAG)
        a("v_cndmask_b32 v41, 0, v41, vcc")
        a("v_cmp_gt_u32 vcc, %d, v41" % thr)
        a("s_cbranch_vccz %s_ok" % lbl)
        a("s_sleep 2")
        a("s_cmp_lt_u32 s%d, %d" % (sSPIN, SPIN_MAX))
        a("s_cbranch_scc1 %s" % lbl)
        a.label(lbl + "_ok")
        a("s_mov_b64 exec, -1")

    a("s_and_b32 s%d, s2, 7" % sR0)
    a("s_lshr_b32 s%d, s2, 3" % sR1)
    a("v_lshrrev_b32 v%d, 7, v0" % vT0)
    a("v_and_b32 v%d, 127, v0" % vT1)
    a("v_lshlrev_b32 v28, 12, v%d" % vT0)
    a("v_lshl_add_u32 v28, v%d, 4, v28" % vT1)
    a("v_bfe_u32 v%d, v%d, 4, 1" % (vT3, vT1))
    a("v_lshlrev_b32 v29, 6, v%d" % vT0)
    a("v_lshl_add_u32 v29, v%d, 4, v29" % vT3)
    a("v_mul_u32_u24 v30, %d, v%d" % (O_ACT_PITCH, vT0))
    a("v_lshl_add_u32 v30, v%d, 8, v30" % vT3)
    a("v_lshrrev_b32 v%d, 5, v%d" % (vT2, vT1))
    a("v_lshl_add_u32 v30, v%d, 6, v30" % vT2)
    a("v_and_b32 v%d, 1, v%d" % (vT2, vT1))
    a("v_lshl_add_u32 v30, v%d, 5, v30" % vT2)
    a("v_bfe_u32 v%d, v%d, 1, 3" % (vT2, vT1))
    a("v_lshl_add_u32 v30, v%d, 1, v30" % vT2)
    a("s_lshl_b32 s%d, s%d, 16" % (sQD, sR0))
    a("s_add_u32 s%d, s%d, 0x%x" % (sQD, sQD, WS_PART))
    a("s_add_u32 s%d, s%d, 0x8000" % (sQD + 1, sQD))
    a("s_lshl_b32 s%d, s%d, 10" % (sQD + 2, sR0))
    a("s_add_u32 s%d, s%d, 0x%x" % (sQD + 2, sQD + 2, WS_STAT))
    a("s_cmp_lg_u32 s%d, 4" % sW)
    a("s_cbranch_scc1 L_o_b5")
    a("s_mov_b32 s%d, 0x%x" % (sT1, WS_Z))
    a("s_mov_b32 s%d, 0" % sSPIN)
    a.label("L_e1")
    a("buffer_load_dwordx4 %s, v%d, %s, s%d offen sc1" % (vr(16, 4), vVO, sr(sWS, 4), sQD + 2))
    a("buffer_load_dword v20, v%d, %s, s%d offen sc1" % (vZ, sr(sWS, 4), sT1))
    a("s_add_u32 s%d, s%d, 1" % (sSPIN, sSPIN))
    a.wait_vm_all()
    a("v_xor_b32 v17, s%d, v17" % sTAG)
    a("v_xor_b32 v19, s%d, v19" % sTAG)
    a("v_xor_b32 v20, s%d, v20" % sTAG)
    a("v_or3_b32 v17, v17, v19, v20")
    a("v_cmp_eq_u32 vcc, 0, v17")
    a("s_bcnt1_i32_b64 s%d, vcc" % sT0)
    a("s_cmp_ge_u32 s%d, %d" % (sT0, OPT["othr"]))
    a("s_cbranch_scc1 L_o_b5")
    a("s_sleep 1")
    a("s_cmp_lt_u32 s%d, %d" % (sSPIN, SPIN_MAX))
    a("s_cbranch_scc1 L_e1")
    a.label("L_o_b5")
    a("s_barrier")
    stamp(a, 5)
    a("s_mov_b32 s%d, 0" % sSPIN)
    a.label("L_o_ld")
    for hk in range(2):
        r = 32 + 16 * hk
        a("buffer_load_dwordx4 %s, v28, %s, s%d offen sc1" % (vr(r, 4), sr(sWS, 4), sQD + hk))
        a("buffer_load_dwordx4 %s, v28, %s, s%d offen offset:2048 sc1" % (vr(r + 4, 4), sr(sWS, 4), sQD + hk))
        a("buffer_load_dwordx4 %s, v29, %s, s%d offen offset:%d sc1" % (vr(r + 8, 4), sr(sWS, 4), sQD + 2, hk * 512))
        a("buffer_load_dwordx4 %s, v29, %s, s%d offen offset:%d sc1" % (vr(r + 12, 4), sr(sWS, 4), sQD + 2, hk * 512 + 32))
    a("s_add_u32 s%d, s%d, 1" % (sSPIN, sSPIN))
    a.wait_vm_all()
    for j in range(16):
        a("v_xor_b32 v%d, s%d, v%d" % (33 + 2 * j, sTAG, 33 + 2 * j))
    a("v_or_b32 v33, v33, v35")
    for j in range(2, 16, 2):
        a("v_or3_b32 v33, v33, v%d, v%d" % (33 + 2 * j, 35 + 2 * j))
    a("v_cmp_ne_u32 vcc, 0, v33")
    a("s_cbranch_vccz L_o_ld_ok")
    a("s_sleep 1")
    a("s_cmp_lt_u32 s%d, %d" % (sSPIN, SPIN_MAX))
    a("s_cbranch_scc1 L_o_ld")
    a.label("L_o_ld_ok")
    for hk in range(2):
        r = 32 + 16 * hk
        o00, o01, o10, o11, m0_, l0, m1, l1 = r, r + 2, r + 4, r + 6, r + 8, r + 10, r + 12, r + 14
        M, e0, e1, den, n0, n1 = [16 + 6 * hk + i for i in range(6)]
        a("v_max_f32 v%d, v%d, v%d" % (M, m0_, m1))
        a("v_sub_f32 v%d, v%d, v%d" % (e0, m0_, M))
        a("v_sub_f32 v%d, v%d, v%d" % (e1, m1, M))
        a("v_mul_f32 v%d, 0x%08x, v%d" % (e0, LOG2E, e0))
        a("v_mul_f32 v%d, 0x%08x, v%d" % (e1, LOG2E, e1))
        a("v_exp_f32 v%d, v%d" % (e0, e0))
        a("v_exp_f32 v%d, v%d" % (e1, e1))
        a("v_mul_f32 v%d, v%d, v%d" % (den, e0, l0))
        a("v_fmac_f32 v%d, v%d, v%d" % (den, e1, l1))
        a("v_rcp_f32 v%d, v%d" % (den, den))
        a("v_mul_f32 v%d, v%d, v%d" % (n0, e0, o00))
        a("v_fmac_f32 v%d, v%d, v%d" % (n0, e1, o10))
        a("v_mul_f32 v%d, v%d, v%d" % (n1, e0, o01))
        a("v_fmac_f32 v%d, v%d, v%d" % (n1, e1, o11))
        a("v_mul_f32 v%d, v%d, v%d" % (n0, n0, den))
        a("v_mul_f32 v%d, v%d, v%d" % (n1, n1, den))
        a("v_cvt_pk_bf16_f32 v%d, v%d, v%d" % (n0, n0, n1))
        a("ds_write_b16 v30, v%d offset:%d" % (n0, L_ACT + hk * 512))
        a("ds_write_b16_d16_hi v30, v%d offset:%d" % (n0, L_ACT + hk * 512 + 16))
    frag_addrs(a, vT0, vT2, O_ACT_PITCH, 7)
    a("s_lshr_b32 s%d, s%d, 2" % (sT0, sW))
    a("s_lshl_b32 s%d, s%d, 8" % (sT1, sT0))
    a("v_add_u32 v%d, s%d, v%d" % (vT0, sT1, vT0))
    a("s_lshl_b32 s%d, s%d, 14" % (sT0, sT0))
    a("s_and_b32 s%d, s%d, 3" % (sT1, sW))
    a("s_lshl_b32 s%d, s%d, 5" % (sT1, sT1))
    a("s_add_u32 s%d, s%d, s%d" % (sT0, sT0, sT1))
    a("s_add_u32 s%d, s%d, %d" % (sT0, sT0, L_W))
    a("v_add_u32 v%d, s%d, v%d" % (vT2, sT0, vT2))
    A0, B0, C = 64, 80, 96
    for s_ in range(4):
        a("ds_read_b64_tr_b16 %s, v%d offset:%d" % (vr(B0 + 4 * s_, 2), vT2, s_ * 4096))
        a("ds_read_b64_tr_b16 %s, v%d offset:%d" % (vr(B0 + 4 * s_ + 2, 2), vT2, s_ * 4096 + 512))
    a.wait_lg_all()
    a("s_barrier")
    tg = [a("ds_read_b128 %s, v%d offset:%d" % (vr(A0 + 4 * s_, 4), vT0, L_ACT + s_ * 64)) for s_ in range(4)]
    a("v_lshlrev_b32 v31, 10, v%d" % vT1)
    a("v_and_b32 v%d, 15, v%d" % (vT2, vL))
    a("v_lshl_add_u32 v31, v%d, 2, v31" % vT2)
    a("s_lshr_b32 s%d, s%d, 2" % (sT0, sW))
    a("s_lshl_b32 s%d, s%d, 11" % (sT0, sT0))
    a("s_and_b32 s%d, s%d, 3" % (sT1, sW))
    a("s_lshl_b32 s%d, s%d, 6" % (sT1, sT1))
    a("s_add_u32 s%d, s%d, s%d" % (sT0, sT0, sT1))
    a("v_add_u32 v31, s%d, v31" % sT0)
    for s_ in range(4):
        a.wait_lg(tg[s_])
        a("v_mfma_f32_16x16x32_bf16 %s, %s, %s, %s" % (vr(C, 4), vr(A0 + 4 * s_, 4), vr(B0 + 4 * s_, 4), "0" if s_ == 0 else vr(C, 4)))
    set_exec(a, 0xffffffff)
    for j in range(4):
        a("ds_write_b32 v31, v%d offset:%d" % (C + j, L_RED + j * 256))
    a("s_mov_b64 exec, -1")
    a.wait_lg_all()
    a("s_barrier")
    a("s_cmp_ge_u32 s%d, 8" % sW)
    a("s_cbranch_scc1 L_d_dma")
    a("v_lshlrev_b32 v%d, 2, v0" % vT0)
    for h in range(4):
        a("ds_read_b32 v%d, v%d offset:%d" % (16 + h, vT0, L_RED + h * 2048))
    a("s_mul_i32 s%d, s%d, 4608" % (sT0, sW))
    a("s_lshl_b32 s%d, s%d, 9" % (sT1, sR1))
    a("s_add_u32 s%d, s%d, s%d" % (sT0, sT0, sT1))
    a("s_add_u32 s%d, s%d, 0x%x" % (sT0, sT0, WS_ACC1))
    a("v_lshlrev_b32 v%d, 3, v%d" % (vT1, vL))
    a.wait_lg_all()
    a("v_add_f32 v16, v16, v17")
    a("v_add_f32 v18, v18, v19")
    a("v_add_f32 v16, v16, v18")
    a("v_floor_f32 v17, v16")
    a("v_sub_f32 v16, v16, v17")
    a("v_cvt_i32_f32 v21, v17")
    a("v_mul_f32 v16, 0x4f800000, v16")
    a("v_cvt_u32_f32 v16, v16")
    a("v_and_or_b32 v20, v16, -16, 1")
    a("buffer_atomic_add_x2 v[20:21], v%d, %s, s%d offen sc1" % (vT1, sr(sWS, 4), sT0))
    stamp(a, 1)
    a.label("L_d_dma")
    a("s_cmp_ge_u32 s%d, 12" % sW)
    a("s_cbranch_scc1 L_d_nodma")
    a("s_mul_i32 s%d, s%d, %d" % (sT0, sR0, 576 * 1152))
    a("s_lshl_b32 s%d, s%d, 7" % (sT1, sR1))
    a("s_add_u32 s%d, s%d, s%d" % (sT0, sT0, sT1))
    srd(a, sB_, P_WD, 575 * 1152 + 128, "s%d" % sT0)
    a("s_mul_i32 s%d, s%d, 48" % (sT2, sW))
    dma_tile(a, 6, 3, 1152, sT2, str(L_W), sB_)
    a.label("L_d_nodma")
    a("s_cmp_lg_u32 s%d, 15" % sW)
    a("s_cbranch_scc1 L_d_b8")
    acc_prepoll("L_dpre", 8)
    a.label("L_d_b8")
    a.wait_vm_all()
    a("s_barrier")
    a("s_and_b32 s%d, s%d, 7" % (sT0, sW))
    a("s_mul_i32 s%d, s%d, 576" % (sT0, sT0))
    a("s_lshl_b32 s%d, s%d, 6" % (sT1, sR1))
    a("s_add_u32 s%d, s%d, s%d" % (sT0, sT0, sT1))
    a("v_add_u32 v70, s%d, v%d" % (sT0, vL))
    a("v_lshlrev_b32 v71, 1, v70")
    a("v_lshlrev_b32 v70, 3, v70")
    srd(a, sA, P_X, 9216)
    srd(a, sB_, P_OUT, 9216)
    a("s_mov_b32 s%d, 0x%x" % (sQD, WS_ACC1))
    a("s_mov_b32 s%d, 0x%x" % (sQD + 1, WS_ACC2))
    a("s_cmp_ge_u32 s%d, 9" % sW)
    a("s_cbranch_scc1 L_d_b9")
    a("buffer_load_ushort v72, v71, %s, 0 offen" % sr(sA, 4))
    a("buffer_load_dwordx2 v[74:75], v70, %s, s%d offen sc1" % (sr(sWS, 4), sQD))
    a("v_and_b32 v%d, 7, v%d" % (vT0, vL))
    a("v_mul_u32_u24 v%d, 9216, v%d" % (vT0, vT0))
    a("v_lshrrev_b32 v%d, 4, v%d" % (vT1, vL))
    a("v_lshl_add_u32 v%d, v%d, 4, v%d" % (vT0, vT1, vT0))
    a("s_mul_i32 s%d, s%d, 1152" % (sT0, sR0))
    a("s_lshl_b32 s%d, s%d, 7" % (sT1, sW))
    a("s_add_u32 s%d, s%d, s%d" % (sT0, sT0, sT1))
    a("s_add_u32 s%d, s%d, 0x%x" % (sT0, sT0, WS_T))
    a("v_bfe_u32 v%d, v%d, 2, 2" % (vT2, vL))
    a("v_lshl_add_u32 v%d, v%d, 3, v%d" % (vT2, vT1, vT2))
    a("v_lshlrev_b32 v%d, 7, v%d" % (vT2, vT2))
    a("v_and_b32 v%d, 3, v%d" % (vT3, vL))
    a("v_lshl_add_u32 v%d, v%d, 3, v%d" % (vT2, vT3, vT2))
    a("s_lshl_b32 s%d, s%d, 13" % (sT1, sW))
    a("s_add_u32 s%d, s%d, %d" % (sT1, sT1, L_W))
    a("v_add_u32 v%d, s%d, v%d" % (vT2, sT1, vT2))
    A0, B0, C = 8, 16, 48
    for s_ in range(2):
        for ct in range(4):
            r = B0 + 4 * (s_ * 4 + ct)
            a("ds_read_b64_tr_b16 %s, v%d offset:%d" % (vr(r, 2), vT2, s_ * 4096 + ct * 32))
            a("ds_read_b64_tr_b16 %s, v%d offset:%d" % (vr(r + 2, 2), vT2, s_ * 4096 + ct * 32 + 512))
    a("v_lshlrev_b32 v65, 10, v%d" % vT1)
    a("v_and_b32 v%d, 15, v%d" % (vT2, vL))
    a("v_lshl_add_u32 v65, v%d, 2, v65" % vT2)
    a("s_lshl_b32 s%d, s%d, 11" % (sT1, sW))
    a("v_add_u32 v65, s%d, v65" % sT1)
    a("s_mov_b32 s%d, 0" % sSPIN)
    a.label("L_d_poll")
    a("buffer_load_dwordx4 %s, v%d, %s, s%d offen sc1" % (vr(A0, 4), vT0, sr(sWS, 4), sT0))
    a("buffer_load_dwordx4 %s, v%d, %s, s%d offen offset:64 sc1" % (vr(A0 + 4, 4), vT0, sr(sWS, 4), sT0))
    a("s_add_u32 s%d, s%d, 1" % (sSPIN, sSPIN))
    a.wait_vm_all()
    a("v_max_u32 v64, v8, v9")
    a("v_max3_u32 v64, v64, v10, v11")
    a("v_max3_u32 v64, v64, v12, v13")
    a("v_max3_u32 v64, v64, v14, v15")
    a("v_cmp_eq_u32 vcc, -1, v64")
    a("s_cbranch_vccz L_d_ok")
    a("s_cmp_lt_u32 s%d, %d" % (sSPIN, SPIN_MAX))
    a("s_cbranch_scc1 L_d_poll")
    a.label("L_d_ok")
    stamp(a, 6)
    a.wait_lg_all()
    for s_ in range(2):
        for ct in range(4):
            a("v_mfma_f32_16x16x32_bf16 %s, %s, %s, %s" % (vr(C + 4 * ct, 4), vr(A0 + 4 * s_, 4), vr(B0 + 4 * (s_ * 4 + ct), 4), "0" if s_ == 0 else vr(C + 4 * ct, 4)))
    set_exec(a, 0xffffffff)
    for ct in range(4):
        for j in range(4):
            a("ds_write_b32 v65, v%d offset:%d" % (C + 4 * ct + j, L_RED + j * 256 + ct * 64))
    a("s_mov_b64 exec, -1")
    a.wait_lg_all()
    a.label("L_d_b9")
    a("s_barrier")
    a("s_cmp_ge_u32 s%d, 8" % sW)
    a("s_cbranch_scc1 L_d_final")
    a("v_lshlrev_b32 v%d, 2, v0" % vT0)
    tg = [a("ds_read_b32 v%d, v%d offset:%d" % (8 + w, vT0, L_RED + w * 2048)) for w in range(9)]
    a("v_and_b32 v76, 15, v74")
    a("v_cmp_ne_u32 vcc, 8, v76")
    a("s_cbranch_vccz L_d_hok")
    a("buffer_load_dwordx2 v[74:75], v70, %s, s%d offen sc1" % (sr(sWS, 4), sQD))
    a.wait_vm_all()
    a.label("L_d_hok")
    for w in range(1, 9):
        a.wait_lg(tg[w])
        a("v_add_f32 v8, v8, v%d" % (8 + w))
    a("v_floor_f32 v17, v8")
    a("v_sub_f32 v8, v8, v17")
    a("v_cvt_i32_f32 v21, v17")
    a("v_mul_f32 v8, 0x4f800000, v8")
    a("v_cvt_u32_f32 v8, v8")
    a("v_and_or_b32 v20, v8, -16, 1")
    a("v_mov_b32 v22, v20")
    a("v_mov_b32 v23, v21")
    a("buffer_atomic_add_x2 v[22:23], v70, %s, s%d offen sc0 sc1" % (sr(sWS, 4), sQD + 1))
    stamp(a, 2)
    a("v_lshlrev_b32 v72, 16, v72")
    fix2f(a, 75, 74, 75)
    bf16r(a, 75, 75)
    a("v_add_f32 v72, v72, v75")
    bf16r(a, 72, 72)
    a.wait_vm_all()
    a("v_add_co_u32 v22, vcc, v22, v20")
    a("v_addc_co_u32 v23, vcc, v23, v21, vcc")
    a("v_and_b32 v24, 15, v22")
    fix2f(a, 23, 22, 23)
    bf16r(a, 23, 23)
    a("v_add_f32 v72, v72, v23")
    a("v_cvt_pk_bf16_f32 v72, v72, v72")
    a("v_cmp_eq_u32 vcc, 8, v24")
    a("s_and_saveexec_b64 s[%d:%d], vcc" % (sQD + 2, sQD + 3))
    a("s_cbranch_execz L_d_nost")
    a("buffer_store_short v72, v71, %s, 0 offen" % sr(sB_, 4))
    a.label("L_d_nost")
    a("s_mov_b64 exec, -1")
    a("s_branch L_fin")
    a.label("L_d_final")
    a("s_cmp_lg_u32 s%d, 9" % sW)
    a("s_cbranch_scc1 L_fin")
    a("s_cmp_lg_u32 s2, 0")
    a("s_cbranch_scc1 L_fin")
    a("v_mov_b32 v%d, s%d" % (vT2, sEPO))
    a("s_mov_b32 s%d, 0x%x" % (sT0, WS_EPOCH))
    a("s_mov_b64 exec, 1")
    a("buffer_store_dword v%d, v%d, %s, s%d offen sc1" % (vT2, vZ, sr(sWS, 4), sT0))
    a("s_mov_b64 exec, -1")
    a("s_branch L_fin")

    a.label("L_GU")
    a("s_sub_u32 s%d, s2, 72" % sR0)
    a("s_cmp_lt_u32 s%d, 4" % sW)
    a("s_cbranch_scc1 L_g_nodma")
    a("s_lshl_b32 s%d, s%d, 6" % (sT2, sR0))
    a("s_cmp_ge_u32 s%d, 10" % sW)
    a("s_cselect_b32 s%d, s%d, s%d" % (sT0, P_WU, P_WG))
    a("s_cselect_b32 s%d, s%d, s%d" % (sT1, P_WU + 1, P_WG + 1))
    a("s_cselect_b32 s%d, 10, 4" % sT3)
    a("s_cselect_b32 s%d, %d, 0" % (sR1, 36864))
    a("s_add_u32 s%d, s%d, s%d" % (sB_, sT0, sT2))
    a("s_addc_u32 s%d, s%d, 0" % (sB_ + 1, sT1))
    a("s_mov_b32 s%d, %d" % (sB_ + 2, 575 * 9216 + 64))
    a("s_mov_b32 s%d, 0x00020000" % (sB_ + 3))
    a("s_sub_u32 s%d, s%d, s%d" % (sT2, sW, sT3))
    a("s_mul_i32 s%d, s%d, 96" % (sT2, sT2))
    a("s_add_u32 s%d, s%d, %d" % (sR1, sR1, L_W))
    dma_tile(a, 6, 2, 9216, sT2, "s%d" % sR1, sB_)
    a.label("L_g_nodma")
    xs = list(range(8, 17))
    a("s_cmp_ge_u32 s%d, 8" % sW)
    a("s_cbranch_scc1 L_g_b8")
    a("s_mul_i32 s%d, s%d, 1152" % (sT0, sW))
    srd(a, sA, P_X, 1152, "s%d" % sT0)
    a("v_lshlrev_b32 v%d, 1, v%d" % (vT0, vL))
    for e in range(9):
        a("buffer_load_ushort v%d, v%d, %s, 0 offen offset:%d" % (xs[e], vT0, sr(sA, 4), e * 128))
    a("s_cmp_lg_u32 s%d, 3" % sW)
    a("s_cbranch_scc1 L_g_b8")
    acc_prepoll("L_gpre", OPT["gthr"])
    a.label("L_g_b8")
    a("s_barrier")
    stamp(a, 5)
    a("s_cmp_ge_u32 s%d, 8" % sW)
    a("s_cbranch_scc1 L_g_b9")
    a("s_mul_i32 s%d, s%d, 4608" % (sT0, sW))
    a("s_add_u32 s%d, s%d, 0x%x" % (sT0, sT0, WS_ACC1))
    a("s_add_u32 s%d, s%d, 4096" % (sT1, sT0))
    a("v_lshlrev_b32 v%d, 3, v%d" % (vT1, vL))
    a("s_mul_i32 s%d, s%d, %d" % (sT2, sW, ACT_PITCH))
    a("v_add_u32 v%d, s%d, v%d" % (vT0, sT2, vT0))
    aa = 32
    a("s_mov_b32 s%d, 0" % sSPIN)
    a.label("L_g_ld")
    for e in range(9):
        a("buffer_load_dwordx2 %s, v%d, %s, s%d offen offset:%d sc1" % (vr(aa + 2 * e, 2), vT1, sr(sWS, 4), sT0 if e < 8 else sT1, (e & 7) * 512))
    a("s_add_u32 s%d, s%d, 1" % (sSPIN, sSPIN))
    a.wait_vm_all()
    a("v_and_b32 v50, v32, v34")
    a("v_or_b32 v51, v32, v34")
    for e in range(2, 9):
        a("v_and_b32 v50, v50, v%d" % (aa + 2 * e))
        a("v_or_b32 v51, v51, v%d" % (aa + 2 * e))
    a("v_and_b32 v50, 8, v50")
    a("v_and_or_b32 v50, v51, 7, v50")
    a("v_cmp_ne_u32 vcc, 8, v50")
    a("s_cbranch_vccz L_g_ld_ok")
    a("s_sleep 1")
    a("s_cmp_lt_u32 s%d, %d" % (sSPIN, SPIN_MAX))
    a("s_cbranch_scc1 L_g_ld")
    a.label("L_g_ld_ok")
    stamp(a, 6)
    for e in range(9):
        fix2f(a, aa + 2 * e + 1, aa + 2 * e, aa + 2 * e + 1)
        a("v_lshlrev_b32 v%d, 16, v%d" % (xs[e], xs[e]))
        bf16r(a, aa + 2 * e + 1, aa + 2 * e + 1)
        a("v_add_f32 v%d, v%d, v%d" % (xs[e], xs[e], aa + 2 * e + 1))
        bf16r(a, xs[e], xs[e])
    layernorm9(a, xs, 26)
    for e in range(9):
        a("v_cvt_pk_bf16_f32 v%d, v%d, v%d" % (xs[e], xs[e], xs[e]))
        a("ds_write_b16 v%d, v%d offset:%d" % (vT0, xs[e], L_ACT + e * 128))
    a.label("L_g_b9")
    frag_addrs(a, vT0, vT2, ACT_PITCH, 6)
    a("s_lshr_b32 s%d, s%d, 2" % (sT0, sW))
    a("s_mul_i32 s%d, s%d, 384" % (sT1, sT0))
    a("v_add_u32 v%d, s%d, v%d" % (vT0, sT1, vT0))
    a("s_mul_i32 s%d, s%d, %d" % (sT0, sT0, 192 * 64))
    a("s_and_b32 s%d, s%d, 1" % (sT1, sW))
    a("s_lshl_b32 s%d, s%d, 5" % (sT1, sT1))
    a("s_add_u32 s%d, s%d, s%d" % (sT0, sT0, sT1))
    a("s_bitcmp1_b32 s%d, 1" % sW)
    a("s_cselect_b32 s%d, %d, 0" % (sT1, 36864))
    a("s_add_u32 s%d, s%d, s%d" % (sT0, sT0, sT1))
    a("s_add_u32 s%d, s%d, %d" % (sT0, sT0, L_W))
    a("v_add_u32 v%d, s%d, v%d" % (vT2, sT0, vT2))
    a("v_lshlrev_b32 v60, 8, v%d" % vT1)
    a("v_and_b32 v%d, 15, v%d" % (vT3, vL))
    a("v_lshl_add_u32 v60, v%d, 2, v60" % vT3)
    a("s_lshl_b32 s%d, s%d, 9" % (sT0, sW))
    a("v_add_u32 v60, s%d, v60" % sT0)
    a.wait_all()
    a("s_barrier")
    a("s_cmp_ge_u32 s%d, 12" % sW)
    a("s_cbranch_scc1 L_g_b10")
    A0, B0, C = 8, 32, 56
    tg = []
    for s_ in range(6):
        a("ds_read_b128 %s, v%d offset:%d" % (vr(A0 + 4 * s_, 4), vT0, L_ACT + s_ * 64))
        a("ds_read_b64_tr_b16 %s, v%d offset:%d" % (vr(B0 + 4 * s_, 2), vT2, s_ * 2048))
        tg.append(a("ds_read_b64_tr_b16 %s, v%d offset:%d" % (vr(B0 + 4 * s_ + 2, 2), vT2, s_ * 2048 + 256)))
    for s_ in range(6):
        a.wait_lg(tg[s_])
        a("v_mfma_f32_16x16x32_bf16 %s, %s, %s, %s" % (vr(C, 4), vr(A0 + 4 * s_, 4), vr(B0 + 4 * s_, 4), "0" if s_ == 0 else vr(C, 4)))
    set_exec(a, 0xffffffff)
    for j in range(4):
        a("ds_write_b32 v60, v%d offset:%d" % (C + j, L_RED + j * 64))
    a("s_mov_b64 exec, -1")
    a.wait_lg_all()
    a.label("L_g_b10")
    a("s_barrier")
    a("s_cmp_ge_u32 s%d, 2" % sW)
    a("s_cbranch_scc1 L_fin")
    a("v_lshrrev_b32 v%d, 4, v0" % vT0)
    a("v_bfe_u32 v%d, v0, 3, 1" % vT1)
    a("v_lshlrev_b32 v%d, 9, v%d" % (vT1, vT1))
    a("v_lshl_add_u32 v%d, v%d, 6, v%d" % (vT1, vT0, vT1))
    a("v_and_b32 v%d, 7, v0" % vT2)
    a("v_lshl_add_u32 v%d, v%d, 3, v%d" % (vT1, vT2, vT1))
    for kp in range(3):
        a("ds_read_b64 %s, v%d offset:%d" % (vr(8 + 2 * kp, 2), vT1, L_RED + kp * 2048))
        a("ds_read_b64 %s, v%d offset:%d" % (vr(14 + 2 * kp, 2), vT1, L_RED + kp * 2048 + 1024))
    a("v_mul_u32_u24 v%d, 9216, v%d" % (vT0, vT0))
    a("v_and_b32 v%d, 15, v0" % vT2)
    a("v_lshl_add_u32 v%d, v%d, 2, v%d" % (vT0, vT2, vT0))
    a("s_lshl_b32 s%d, s%d, 6" % (sT0, sR0))
    a("s_add_u32 s%d, s%d, 0x%x" % (sT0, sT0, WS_T))
    a.wait_lg_all()
    for c in range(2):
        G, U = 8 + c, 14 + c
        a("v_add_f32 v%d, v%d, v%d" % (G, G, G + 2))
        a("v_add_f32 v%d, v%d, v%d" % (G, G, G + 4))
        a("v_add_f32 v%d, v%d, v%d" % (U, U, U + 2))
        a("v_add_f32 v%d, v%d, v%d" % (U, U, U + 4))
        bf16r(a, G, G)
        bf16r(a, U, U)
        gelu(a, G, 20 + 2 * c, 21 + 2 * c)
        bf16r(a, G, G)
        a("v_mul_f32 v%d, v%d, v%d" % (G, G, U))
    a("v_cvt_pk_bf16_f32 v8, v8, v9")
    a("buffer_store_dword v8, v%d, %s, s%d offen sc1" % (vT0, sr(sWS, 4), sT0))
    a.label("L_fin")
    if OPT["stamp"]:
        stamp(a, 7)
        a("s_waitcnt lgkmcnt(0)")
        for i in range(NSTAMP):
            a("v_writelane_b32 v126, s%d, %d" % (sST + 2 * i, i))
        a("s_getreg_b32 s%d, hwreg(HW_REG_XCC_ID)" % sT0)
        a("v_writelane_b32 v126, s%d, 15" % sT0)
        a("v_lshlrev_b32 v127, 2, v%d" % vL)
        a("s_lshl_b32 s%d, s2, 4" % sT0)
        a("s_add_u32 s%d, s%d, s%d" % (sT0, sT0, sW))
        a("s_lshl_b32 s%d, s%d, 6" % (sT0, sT0))
        a("s_add_u32 s%d, s%d, 0x%x" % (sT0, sT0, WS_STAMP))
        a("s_mov_b64 exec, 0xffff")
        a("buffer_store_dword v126, v127, %s, s%d offen" % (sr(sWS, 4), sT0))
    if OPT["dbg"]:
        a("s_cmp_lg_u32 s%d, 0" % sW)
        a("s_cbranch_scc1 L_end")
        a("s_cmp_eq_u32 s2, 0")
        a("s_cselect_b32 s%d, 0, 256" % sT1)
        a("s_cmp_eq_u32 s2, 200")
        a("s_cselect_b32 s%d, 32, s%d" % (sT1, sT1))
        a("v_subrev_u32 v126, s%d, v126" % sST)
        srd(a, sA, P_DBG, 256)
        a("s_mov_b64 exec, 0xff")
        a("buffer_store_dword v126, v127, %s, s%d offen" % (sr(sA, 4), sT1))
    a.label("L_end")
    a("s_endpgm")
    nv = max(128, (a.maxv + 8) // 8 * 8)
    a.raw(""".section .rodata,"a"
.p2align 6
.amdhsa_kernel %s
  .amdhsa_next_free_vgpr %d
  .amdhsa_next_free_sgpr %d
  .amdhsa_accum_offset %d
  .amdhsa_group_segment_fixed_size 0
  .amdhsa_kernarg_size 96
  .amdhsa_user_sgpr_count 2
  .amdhsa_user_sgpr_kernarg_segment_ptr 1
  .amdhsa_system_sgpr_workgroup_id_x 1
  .amdhsa_float_denorm_mode_32 3
.end_amdhsa_kernel
""" % (name, nv, a.maxs + 1, nv))
    hdr = open("cdna_kernels/%s.s.ref" % NAME).read().split("; @launch")[0]
    hdr += "; @launch grid=(256,1,1) block=(1024,1,1) lds=%d\n" % LDS_BYTES
    hdr += '.amdgcn_target "amdgcn-amd-amdhsa--gfx950"\n.text\n'
    return hdr + a.text()


if __name__ == "__main__":
    args = sys.argv[1:]
    for k in list(args):
        if k.startswith("--"):
            kv = k[2:].split("=")
            OPT[kv[0]] = int(kv[1]) if len(kv) > 1 else 1
            args.remove(k)
    out = args[0] if args else "cdna_kernels/%s.s" % NAME
    open(out, "w").write(gen())
```
